```python
import torch

def _softmax(x, axis=-1):
    return torch.softmax(x, dim=axis)
def _gelu(x):
    return torch.nn.functional.gelu(x, approximate="tanh")
def _silu(x):
    return torch.nn.functional.silu(x)
def _sigmoid(x):
    return torch.sigmoid(x)
def _layernorm(x, axis=-1, eps=1e-5):
    m = x.mean(dim=axis, keepdim=True)
    v = x.var(dim=axis, keepdim=True, unbiased=False)
    return (x - m) / torch.sqrt(v + eps)
def _scatter_add(tgt, idx, src, axis=0):
    return tgt.clone().index_add_(axis, idx, src)
def _segment_sum(src, seg, n):
    out = torch.zeros((n,) + src.shape[1:], dtype=src.dtype)
    return out.index_add_(0, seg, src)
def _pad(x, pw):
    flat = tuple(v for pair in reversed(pw) for v in pair)
    return torch.nn.functional.pad(x, flat)

kernel_name = 'standalone__window_attn_swin__vision'

def setup_inputs():

    _w = (lambda a: (lambda t: t.to(torch.bfloat16) if t.is_floating_point() else t)(torch.as_tensor(a)))
    H = W = 256
    C = 384
    ws = 8
    nh = 4
    shift = ws // 2
    coords = torch.stack(torch.meshgrid(torch.arange(ws), torch.arange(ws), indexing='ij'), 0).reshape(2, -1)
    rel = coords[:, :, None] - coords[:, None, :]
    rel[0] += ws - 1
    rel[1] += ws - 1
    rel[0] *= 2 * ws - 1
    rp_idx = rel.sum(0).to(torch.int64)
    img_mask = torch.zeros((1, H, W, 1), dtype=float)
    cnt = 0
    for hs in (slice(0, H - ws), slice(H - ws, H - shift), slice(H - shift, H)):
        for vs in (slice(0, W - ws), slice(W - ws, W - shift), slice(W - shift, W)):
            img_mask[:, hs, vs, :] = cnt
            cnt += 1
    mw = img_mask.reshape(1, H // ws, ws, W // ws, ws, 1).permute(0, 1, 3, 2, 4, 5).reshape(-1, ws * ws)
    am = mw[:, :, None] - mw[:, None, :]
    attn_mask = torch.where(am != 0, -100.0, 0.0).to(float)
    return {
        "x": _w((lambda *s: torch.randn(*s, dtype=torch.bfloat16) * 1.6)(1, H, W, C)),
        "wqkv": _w((lambda *s: torch.randn(*s, dtype=torch.bfloat16) * 1.6)(C, 3 * C) * 0.02),
        "wo": _w((lambda *s: torch.randn(*s, dtype=torch.bfloat16) * 0.05)(C, C) * 0.02),
        "rpb": _w((lambda *s: torch.randn(*s, dtype=torch.bfloat16) * 0.2)((2 * ws - 1) * (2 * ws - 1), nh)),
        "rp_idx": _w(rp_idx),
        "attn_mask": _w(attn_mask),
    }

def reference(x, wqkv, wo, rpb, rp_idx, attn_mask):
    B, H, W, C = x.shape
    N = rp_idx.shape[0]
    ws = int(round(N ** 0.5))
    nh = rpb.shape[-1]
    hd = C // nh
    shift = ws // 2
    xs = torch.roll(x, (-shift, -shift), (1, 2))
    nWh = H // ws
    nWw = W // ws
    xw = (lambda x, *d: x.permute(*d))(xs.reshape(B, nWh, ws, nWw, ws, C), 0, 1, 3, 2, 4, 5).reshape(B * nWh * nWw, N, C)
    qkv = (lambda x, *d: x.permute(*d))(torch.einsum('wnc,cd->wnd', xw, wqkv).reshape(-1, N, 3, nh, hd), 2, 0, 3, 1, 4)
    q, k, v = qkv[0], qkv[1], qkv[2]
    attn = torch.einsum('whid,whjd->whij', q, k) * (hd ** -0.5)
    bias = (lambda x, *d: x.permute(*d))(rpb[rp_idx.reshape(-1)].reshape(N, N, nh), 2, 0, 1)
    attn = attn + bias[None, :, :, :]
    attn = (attn.reshape(B, nWh * nWw, nh, N, N) + attn_mask[None, :, None, :, :]).reshape(-1, nh, N, N)
    attn = _softmax(attn, axis=-1)
    out = (lambda x, *d: x.permute(*d))(torch.einsum('whij,whjd->whid', attn, v), 0, 2, 1, 3).reshape(-1, N, C)
    out = torch.einsum('wnc,cd->wnd', out, wo)
    out = (lambda x, *d: x.permute(*d))(out.reshape(B, nWh, nWw, ws, ws, C), 0, 1, 3, 2, 4, 5).reshape(B, H, W, C)
    return torch.roll(out, (shift, shift), (1, 2))
```

```python
import heapq, sys
from collections import defaultdict

class VR:
    __slots__ = ("name", "n", "cls", "phys", "pcls", "first", "last", "fixed")
    def __init__(s, name, n, cls="v", phys=None):
        s.name = name; s.n = n; s.cls = cls
        s.phys = phys; s.pcls = cls[0] if phys is not None else None
        s.first = None; s.last = None; s.fixed = phys is not None
    def __getitem__(s, key):
        if isinstance(key, slice):
            return R(s, key.start, key.stop - key.start)
        return R(s, key, 1)
    def all(s): return R(s, 0, s.n)
    def __repr__(s): return f"VR({s.name})"

class R:
    __slots__ = ("vr", "lo", "cnt")
    def __init__(s, vr, lo, cnt): s.vr = vr; s.lo = lo; s.cnt = cnt
    def elems(s): return [(s.vr, s.lo + i) for i in range(s.cnt)]
    def txt(s):
        p = s.vr.phys + s.lo
        c = s.vr.pcls
        return f"{c}{p}" if s.cnt == 1 else f"{c}[{p}:{p + s.cnt - 1}]"
    def pel(s): return [(s.vr.pcls, s.vr.phys + s.lo + i) for i in range(s.cnt)]

def rr(x):
    return x.all() if isinstance(x, VR) else x

class Ins:
    __slots__ = ("kind", "fmt", "ops", "defs", "uses", "after", "release", "deadline", "cost", "idx", "preds", "succs",
                 "emitted", "eslot", "pos", "main", "dl", "tag", "needs", "npred", "order", "cuses", "stage")
    def __init__(s, kind, fmt, ops=(), defs=(), uses=(), release=0, deadline=None, tag=None, cuses=()):
        s.kind = kind; s.fmt = fmt; s.ops = [rr(o) if isinstance(o, (VR, R)) else o for o in ops]
        s.defs = [rr(d) for d in defs]; s.uses = [rr(u) for u in uses]; s.cuses = [rr(u) for u in cuses]
        s.after = []; s.release = release; s.deadline = deadline; s.tag = tag
        s.cost = {"trans": 2, "wait": 1, "nop": 0}.get(kind, 1)
        s.preds = []; s.succs = []; s.emitted = False; s.eslot = None; s.pos = None; s.main = False; s.dl = None
        s.needs = []
        s.stage = None
    def text(s):
        return s.fmt.format(*[o.txt() if isinstance(o, R) else o for o in s.ops])

ASYNC_LGKM = ("dsr", "dsw")
ASYNC_VM = ("vld", "dma", "vst")

def lat_raw(p, c):
    if p.kind == "dsr": return 8
    if p.kind == "vld": return 0
    if p.kind == "mfma":
        if c.kind == "mfma": return 0
        return 8
    if p.kind in ("valu", "trans"):
        if c.kind == "mfma": return 2
        if c.kind == "perm": return 2
        if p.kind == "trans": return 1
        return 0
    if p.kind == "perm":
        if c.kind == "mfma" or c.kind == "perm": return 2
        return 0
    return 0

class Prog:
    def __init__(s):
        s.ins = []; s.main = []; s.vrs = []
        s.lastw = {}; s.readers = defaultdict(list); s.pre = []
    def vr(s, name, n, cls="v", phys=None):
        v = VR(name, n, cls, phys); s.vrs.append(v); return v
    def add(s, ins, main=False, after=(), pre=False):
        ins.idx = len(s.ins); ins.main = main
        s.ins.append(ins)
        if pre: s.pre.append(ins)
        if main:
            ins.order = len(s.main); s.main.append(ins)
        deps = {}
        def dep(p, lat):
            if p is ins: return
            deps[p] = max(deps.get(p, -1), lat)
        for u in ins.uses + ins.cuses:
            for e in u.elems():
                w = s.lastw.get(e)
                if w is not None: dep(w, lat_raw(w, ins))
        for d in ins.defs:
            for e in d.elems():
                w = s.lastw.get(e)
                if w is not None:
                    dep(w, 0 if (w.kind == "mfma" and ins.kind == "mfma") else (8 if w.kind == "mfma" else 0))
                for r in s.readers[e]:
                    dep(r, 0)
        for a in after:
            if isinstance(a, tuple): dep(a[0], a[1])
            else: dep(a, 0)
        for u in ins.uses + ins.cuses:
            for e in u.elems(): s.readers[e].append(ins)
        for d in ins.defs:
            for e in d.elems():
                s.lastw[e] = ins; s.readers[e] = []
        for p, l in deps.items():
            ins.preds.append((p, l)); p.succs.append((ins, l))
        return ins

    def schedule(s, budget_fn=None, verbose=True):
        main = s.main
        slot = 0
        for m in main:
            m.dl = slot
            if m.kind == "mfma": slot += 1
        nslots = slot
        for i in reversed(s.ins):
            if i.main: continue
            d = i.deadline if i.deadline is not None else nslots + 1000
            for c, l in i.succs:
                d = min(d, c.dl - l)
            i.dl = d
        for i in s.ins: i.npred = len(i.preds)
        for i in s.pre:
            i.emitted = True; i.eslot = 0
            for c, l in i.succs: c.npred -= 1
        out = []
        ready = []
        pending = []
        cur = [0]
        forced = [0]
        def earliest(i):
            e = i.release
            for p, l in i.preds: e = max(e, p.eslot + l)
            return e
        def emit(i):
            assert not i.emitted, i.fmt
            i.emitted = True; i.eslot = cur[0]; i.pos = len(out); out.append(i)
            for c, l in i.succs:
                c.npred -= 1
                if c.npred == 0 and not c.main:
                    heapq.heappush(pending, (earliest(c), c.dl, c.idx, c))
        for i in s.ins:
            if i.npred == 0 and not i.main and not i.emitted:
                heapq.heappush(pending, (earliest(i), i.dl, i.idx, i))
        def force(i):
            for p, l in sorted(i.preds, key=lambda x: x[0].idx):
                if not p.emitted:
                    assert not p.main, f"main order violates dependence: {p.fmt} needed by {i.fmt}"
                    force(p); forced[0] += 1; emit(p)
        dens = defaultdict(int)
        for m in main:
            force(m)
            emit(m)
            if m.kind == "mfma":
                cur[0] += 1
            b = budget_fn(cur[0]) if budget_fn else 2
            if m.kind != "mfma": b = 1
            while b > 0:
                while pending and pending[0][0] <= cur[0]:
                    e, d, ix, i = heapq.heappop(pending)
                    if not i.emitted: heapq.heappush(ready, (i.dl, i.idx, i))
                while ready and ready[0][2].emitted: heapq.heappop(ready)
                if not ready: break
                pick = None; stash = []
                while ready:
                    c = heapq.heappop(ready)
                    if c[2].emitted: continue
                    if c[2].cost <= b or b == 2: pick = c; break
                    stash.append(c)
                    if len(stash) > 6: break
                for c in stash: heapq.heappush(ready, c)
                if pick is None: break
                emit(pick[2]); b -= pick[2].cost; dens[cur[0]] += pick[2].cost
        rest = [i for i in s.ins if not i.emitted]
        for i in rest:
            if not i.emitted:
                force(i); emit(i)
        s.out = out; s.nslots = nslots
        if verbose:
            print(f"; scheduled {len(out)} instrs, {nslots} mfma slots, forced {forced[0]}, leftover {len(rest)}", file=sys.stderr)
        return out

    def allocate(s, vquads, aquads, vsingles, verbose=True):
        for v in s.vrs: v.first = v.last = None
        for p, i in enumerate(s.out):
            for r in i.defs + i.uses + i.cuses:
                v = r.vr
                if v.first is None: v.first = p
                v.last = p
        ev = [v for v in s.vrs if not v.fixed and v.first is not None]
        ev.sort(key=lambda v: v.first)
        freeV = list(vquads); freeA = list(aquads); freeS = list(vsingles)
        live = []
        peakV = peakA = peakS = 0
        nV, nA, nS = len(freeV), len(freeA), len(freeS)
        for k, v in enumerate(ev):
            while live and live[0][0] < v.first:
                _, _, o = heapq.heappop(live)
                if o.n < 4 and o.pcls == "v" and o.name.startswith("t_"): freeS.append(o.phys)
                elif o.pcls == "v": freeV.append(o.phys)
                else: freeA.append(o.phys)
            if v.name.startswith("t_"):
                assert v.n == 1
                if not freeS: raise RuntimeError(f"out of single regs at pos {v.first} for {v.name}")
                v.phys = freeS.pop(0); v.pcls = "v"
            else:
                assert v.n == 4, v.name
                order = {"v": "v", "a": "a", "va": "va", "av": "av"}[v.cls]
                done = False
                for c in order:
                    fl = freeV if c == "v" else freeA
                    if fl:
                        v.phys = fl.pop(0); v.pcls = c; done = True; break
                if not done:
                    names = sorted((o.name for _, _, o in live))
                    raise RuntimeError(f"out of {v.cls} quads at pos {v.first} (slot {s.out[v.first].eslot}) for {v.name}; live: {names}")
            heapq.heappush(live, (v.last, k, v))
            peakV = max(peakV, nV - len(freeV)); peakA = max(peakA, nA - len(freeA)); peakS = max(peakS, nS - len(freeS))
        if verbose: print(f"; alloc peak: V quads {peakV}/{nV}, A quads {peakA}/{nA}, singles {peakS}/{nS}", file=sys.stderr)

    def finalize(s, lgkm0=(), vm0=(), verbose=True):
        lg = [i for i in s.pre if i.kind in ASYNC_LGKM]; vm = [i for i in s.pre if i.kind in ASYNC_VM]
        done = set()
        lastw = {}
        for i in s.pre:
            for r in i.defs:
                for e in r.pel(): lastw[e] = i
        res = []
        nwait = 0
        def need(prods):
            nonlocal lg, vm, nwait
            nl = None; nv = None
            for p in prods:
                if p in done: continue
                if p in lg:
                    k = len(lg) - 1 - lg.index(p); nl = k if nl is None else min(nl, k)
                elif p in vm:
                    k = len(vm) - 1 - vm.index(p); nv = k if nv is None else min(nv, k)
            parts = []
            if nv is not None:
                nv = min(nv, 63); parts.append(f"vmcnt({nv})")
                for p in vm[:len(vm) - nv]: done.add(p)
                vm = vm[len(vm) - nv:] if nv > 0 else []
            if nl is not None:
                nl = min(nl, 15); parts.append(f"lgkmcnt({nl})")
                for p in lg[:len(lg) - nl]: done.add(p)
                lg = lg[len(lg) - nl:] if nl > 0 else []
            if parts:
                res.append(("wait", "s_waitcnt " + " ".join(parts), None)); nwait += 1
        for i in s.out:
            prods = list(i.needs)
            for r in i.uses + i.cuses + i.defs:
                for e in r.pel():
                    p = lastw.get(e)
                    if p is not None and p not in done: prods.append(p)
            need(prods)
            if i.kind != "wait":
                res.append((i.kind, i.text(), i))
            for r in i.defs:
                for e in r.pel():
                    if i.kind in ("dsr", "vld"): lastw[e] = i
                    else: lastw.pop(e, None)
            if i.kind in ASYNC_LGKM: lg.append(i)
            if i.kind in ASYNC_VM: vm.append(i)
        fin = []
        hist = []
        state = 0
        wr = {}
        crd = {}
        strd = {}
        m0w = -10
        nnop = 0
        for kind, text, i in res:
            req = 0
            if i is not None:
                def chk(e, n):
                    nonlocal req
                    w = wr.get(e)
                    if w is not None:
                        req = max(req, n - (state - w[0] - 1))
                for r in i.uses + i.cuses:
                    isC = any(r is c for c in i.cuses)
                    for e in r.pel():
                        w = wr.get(e)
                        if w is None: continue
                        wk = w[1]
                        if wk == "mfma":
                            if i.kind == "mfma":
                                if not isC: chk(e, 8)
                                else:
                                    if w[2] != (r.vr.pcls, r.vr.phys + r.lo, r.cnt): chk(e, 6)
                            else: chk(e, 8)
                        elif wk in ("valu", "trans", "perm"):
                            if i.kind == "mfma": chk(e, 2)
                            elif i.kind == "perm": chk(e, 2)
                            elif wk == "trans" and i.kind in ("valu", "perm", "dsw", "vst"): chk(e, 1)
                for r in i.defs:
                    for e in r.pel():
                        w = wr.get(e)
                        if w is not None and w[1] == "mfma" and i.kind != "mfma": chk(e, 8)
                        if w is not None and w[1] == "mfma" and i.kind == "mfma":
                            if w[2] != (r.vr.pcls, r.vr.phys + r.lo, r.cnt): chk(e, 8)
                        if i.kind in ("valu", "trans", "perm"):
                            c = crd.get(e)
                            if c is not None: req = max(req, 3 - (state - c - 1))
                            c = strd.get(e)
                            if c is not None: req = max(req, 2 - (state - c - 1))
                        if i.kind == "perm":
                            if w is not None and w[1] in ("valu", "trans", "perm"): chk(e, 2)
                if i.kind == "dma" and m0w >= 0: req = max(req, 1 - (state - m0w - 1))
            if req > 0:
                fin.append(f"s_nop {req - 1}"); state += req; nnop += 1
            fin.append(text)
            if i is not None:
                for r in i.defs:
                    for e in r.pel():
                        if i.kind in ("mfma", "valu", "trans", "perm"):
                            wr[e] = (state, i.kind, (r.vr.pcls, r.vr.phys + r.lo, r.cnt))
                        else: wr.pop(e, None)
                for r in i.cuses:
                    for e in r.pel(): crd[e] = state
                if i.kind in ("vst", "dsw"):
                    for r in i.uses:
                        if r.cnt >= 3:
                            for e in r.pel(): strd[e] = state
                if i.kind == "salu" and " m0," in text: m0w = state
            state += 1
        if verbose: print(f"; finalize: {len(fin)} lines, {nwait} waits, {nnop} nops", file=sys.stderr)
        s.final_lg = lg; s.final_vm = vm
        return fin
```

```python
import sys, math, struct
from sched import *

NAME = "standalone__window_attn_swin__vision_kernel"
def f2u(x): return struct.unpack("<I", struct.pack("<f", x))[0]
SCALE = 96 ** -0.5
LOG2E = 1.4426950408889634
C_EXP = SCALE * LOG2E
INV_SCALE = 1.0 / SCALE
MASKV = -100.0

SLOT = 24576
LDS_O = 2 * SLOT
LDS_TB = LDS_O + 98304
LDS_TOTAL = 163840
PITCH_Q = 2304
PITCH_O = 768

S_X, S_W, S_WO, S_B, S_OUT = "s[16:19]", "s[20:23]", "s[24:27]", "s[28:31]", "s[32:35]"
S_WAVE, S_WQROW, S_WOROW, S_LDSW, S_C = "s36", "s37", "s38", "s39", "s40"

class Cfg:
    code_prefetch = True
    pv_pos = 1
    dbg = None

def prologue(cfg):
    L = []
    A = L.append
    A("s_load_dwordx4 s[4:7], s[0:1], 0")
    A("s_load_dwordx4 s[8:11], s[0:1], 16")
    A("s_load_dwordx2 s[12:13], s[0:1], 48")
    A("s_cmp_ge_u32 s2, 256")
    A("s_cbranch_scc1 L_done")
    A("v_lshrrev_b32 v32, 6, v0")
    A("v_and_b32 v1, 63, v0")
    A("v_readfirstlane_b32 s36, v32")
    A("v_and_b32 v33, 15, v1")
    A("v_lshrrev_b32 v34, 4, v1")
    A("s_nop 1")
    A("s_lshl_b32 s14, s2, 2")
    A("s_add_u32 s14, s14, s36")
    A("s_lshr_b32 s15, s14, 5")
    A("s_and_b32 s14, s14, 31")
    A("s_lshl_b32 s41, s15, 3")
    A("s_add_u32 s41, s41, 4")
    A("s_lshl_b32 s42, s14, 3")
    A("s_add_u32 s42, s42, 4")
    A("v_and_b32 v35, 7, v33")
    A("v_lshrrev_b32 v36, 3, v33")
    A("v_add_u32 v35, s42, v35")
    A("v_and_b32 v35, 255, v35")
    A("s_movk_i32 s43, 768")
    for tb in range(4):
        A(f"v_add_u32 v37, s41, v36")
        if tb: A(f"v_add_u32 v37, {2*tb}, v37")
        A(f"v_and_b32 v37, 255, v37")
        A(f"v_lshl_add_u32 v37, v37, 8, v35")
        A(f"v_mul_lo_u32 v37, v37, s43")
        A(f"v_lshl_add_u32 v{2+tb}, v34, 4, v37")
    A("v_min_u32 v38, 179, v0")
    A("v_mul_u32_u24 v39, 21846, v38")
    A("v_lshrrev_b32 v39, 18, v39")
    A("v_mul_u32_u24 v40, 12, v39")
    A("v_sub_u32 v40, v38, v40")
    A("v_mul_u32_u24 v41, 15, v39")
    A("v_add_u32 v41, 11, v41")
    A("v_sub_u32 v41, v41, v40")
    A("v_lshlrev_b32 v41, 3, v41")
    A("v_mul_u32_u24 v42, 48, v39")
    A("v_lshl_add_u32 v42, v40, 2, v42")
    A(f"v_add_u32 v42, {LDS_TB}, v42")
    A("s_waitcnt lgkmcnt(0)")
    A("s_mov_b32 s16, s4\ns_and_b32 s17, s5, 0xffff\ns_mov_b32 s18, 50331648\ns_mov_b32 s19, 0x20000")
    A("s_sub_u32 s20, s6, 3072\ns_subb_u32 s21, s7, 0\ns_and_b32 s21, s21, 0xffff")
    A(f"s_mov_b32 s22, {884736+3072}\ns_mov_b32 s23, 0x20000")
    A("s_sub_u32 s24, s8, 3072\ns_subb_u32 s25, s9, 0\ns_and_b32 s25, s25, 0xffff")
    A(f"s_mov_b32 s26, {294912+3072}\ns_mov_b32 s27, 0x20000")
    A("s_mov_b32 s28, s10\ns_and_b32 s29, s11, 0xffff\ns_mov_b32 s30, 1800\ns_mov_b32 s31, 0x20000")
    A("s_mov_b32 s32, s12\ns_and_b32 s33, s13, 0xffff\ns_mov_b32 s34, 50331648\ns_mov_b32 s35, 0x20000")
    for a in range(4):
        A(f"buffer_load_dwordx2 v[{44+2*a}:{45+2*a}], v41, {S_B}, 0 offen offset:{(3-a)*8}")
    A("v_lshrrev_b32 v52, 2, v1")
    A("v_lshrrev_b32 v53, 5, v1")
    A("v_lshlrev_b32 v53, 1, v53")
    A("v_and_b32 v54, 3, v1")
    A("v_xor_b32 v54, v54, v53")
    A("v_mul_u32_u24 v52, 2304, v52")
    A("v_lshl_add_u32 v8, v54, 4, v52")
    A(f"s_mul_i32 s37, s36, {96*PITCH_Q}")
    A(f"s_mul_i32 s38, s36, {96*PITCH_O}")
    A("s_mul_i32 s39, s36, 6144")
    A(f"s_mov_b32 s40, {f2u(C_EXP):#x}")
    return L

def prologue2(cfg, nvm_after_rpb):
    L = []
    A = L.append
    A("v_bfe_u32 v52, v1, 2, 2")
    A("v_and_b32 v53, 3, v1")
    A("v_lshlrev_b32 v54, 6, v52")
    A("v_lshl_add_u32 v54, v53, 3, v54")
    A("v_and_b32 v55, 1, v34")
    A("v_lshl_add_u32 v54, v55, 9, v54")
    A("v_lshrrev_b32 v56, 1, v34")
    A("v_lshl_add_u32 v54, v56, 10, v54")
    A("v_lshl_add_u32 v6, v55, 5, v54")
    A("v_xor_b32 v7, 32, v6")
    A("v_lshlrev_b32 v15, 4, v1")
    A(f"s_mul_i32 s41, s36, 24576")
    A(f"s_add_u32 s41, s41, {LDS_O}")
    A("v_add_u32 v10, s41, v15")
    A("v_and_b32 v57, 7, v33")
    A("v_sub_u32 v57, 7, v57")
    A("v_lshl_add_u32 v57, v55, 2, v57")
    A("v_and_b32 v58, 3, v57")
    A("v_sub_u32 v57, v57, v58")
    A("v_mul_u32_u24 v58, 720, v58")
    A("v_lshl_add_u32 v58, v57, 2, v58")
    A("v_sub_u32 v59, v36, v56")
    A("v_add_u32 v59, 1, v59")
    A("v_mul_u32_u24 v59, 48, v59")
    A("v_add_u32 v58, v58, v59")
    A(f"v_add_u32 v9, {LDS_TB}, v58")
    A("v_bfe_u32 v57, v33, 2, 1")
    A("v_xor_b32 v57, v57, v55")
    A("s_cmp_eq_u32 s14, 31")
    A("s_cselect_b32 s41, 1, 0")
    A("v_and_b32 v57, s41, v57")
    A("v_cvt_f32_u32 v57, v57")
    A(f"v_mul_f32 v11, {f2u(MASKV*INV_SCALE):#x}, v57")
    A(f"v_mul_f32 v13, {f2u(MASKV*LOG2E):#x}, v57")
    A("s_cmp_eq_u32 s15, 31")
    A("s_cselect_b32 s41, 1, 0")
    A("v_cvt_u32_f32 v57, v57")
    A("v_or_b32 v57, s41, v57")
    A("v_cvt_f32_u32 v57, v57")
    A(f"v_mul_f32 v12, {f2u(MASKV*INV_SCALE):#x}, v57")
    A(f"v_mul_f32 v14, {f2u(MASKV*LOG2E):#x}, v57")
    A(f"s_waitcnt vmcnt({nvm_after_rpb})")
    A(f"s_mov_b32 s41, {f2u(INV_SCALE):#x}")
    for a in range(4):
        for h in range(4):
            src = 44 + 2 * a + (h >> 1)
            t = 60 + (a * 4 + h) % 8
            if h & 1: A(f"v_and_b32 v{t}, 0xffff0000, v{src}")
            else: A(f"v_lshlrev_b32 v{t}, 16, v{src}")
            A(f"v_mul_f32 v{t}, s41, v{t}")
            A(f"ds_write_b32 v42, v{t} offset:{h*2880 + a*720}")
    A("s_waitcnt lgkmcnt(0)")
    return L

def build(cfg):
    P = Prog()
    XOFF = [P.vr(f"xoff{t}", 1, "v", 2 + t) for t in range(4)]
    RDA = [P.vr("rdA0", 1, "v", 6), P.vr("rdA1", 1, "v", 7)]
    DMAV = P.vr("dmav", 1, "v", 8)
    BIAS = P.vr("bias", 1, "v", 9)
    OLDS = P.vr("olds", 1, "v", 10)
    VMS = P.vr("vms", 1, "v", 11); VMD = P.vr("vmd", 1, "v", 12)
    CMS = P.vr("cms", 1, "v", 13); CMD = P.vr("cmd", 1, "v", 14)
    RDO = P.vr("rdO", 1, "v", 15)
    LANE = P.vr("lane", 1, "v", 1)
    X = [[P.vr(f"X{t}_{s}", 4, "a", 4 * (t * 12 + s)) for s in range(12)] for t in range(4)]
    WR = [P.vr(f"WR{i}", 4, "a", 192 + 4 * i) for i in range(6)]
    M0 = P.vr("m0", 1, "m", 0)
    SOFF = [P.vr("so0", 1, "s", 42), P.vr("so1", 1, "s", 43)]
    tcount = [0]
    def T(n="t"):
        tcount[0] += 1
        return P.vr(f"t_{n}{tcount[0]}", 1, "v")
    qcount = [0]
    def Q(n, cls="v"):
        qcount[0] += 1
        return P.vr(f"{n}#{qcount[0]}", 4, cls)
    slotn = [0]
    def mfma(D, A_, B_, C=None, first=False):
        if first:
            i = Ins("mfma", "v_mfma_f32_16x16x32_bf16 {0}, {1}, {2}, 0", [D, A_, B_], defs=[D], uses=[A_, B_])
        else:
            i = Ins("mfma", "v_mfma_f32_16x16x32_bf16 {0}, {1}, {2}, {0}", [D, A_, B_], defs=[D], uses=[A_, B_], cuses=[D])
        P.add(i, main=True); slotn[0] += 1
        return i
    def valu(fmt, ops, defs, uses, kind="valu", release=0, deadline=None):
        return P.add(Ins(kind, fmt, ops, defs=defs, uses=uses, release=release, deadline=deadline))

    stages = []
    for h in range(4):
        for t, base in (("Q", 0), ("K", 384), ("V", 768)):
            for g in range(3):
                stages.append(dict(kind=t, h=h, g=g, col=(base + 96 * h + 32 * g) * 2, wo=False))
    for m in range(12):
        stages.append(dict(kind="O", h=None, g=m, col=64 * m, wo=True))
    for i, st in enumerate(stages):
        st["i"] = i; st["slot"] = (i & 1) * SLOT; st["dmas"] = []; st["reads"] = []; st["bar"] = None

    def dma_stage(st, after, release, pre=False, step=4):
        out = []
        pitch = PITCH_O if st["wo"] else PITCH_Q
        srd = S_WO if st["wo"] else S_W
        srow = S_WOROW if st["wo"] else S_WQROW
        for i in range(6):
            rel = release + step * i
            if i in (0, 4):
                ins = Ins("salu", "s_add_u32 m0, " + S_LDSW + ", {0}", [str(st["slot"] + (4096 if i == 4 else 0))], defs=[M0], release=rel)
                P.add(ins, after=after, pre=pre); out.append(ins)
            io = (i % 4) * 1024
            lit = st["col"] + 16 * i * pitch + 3072 - io
            so = SOFF[i % 2]
            ins = Ins("salu", "s_add_u32 {0}, " + srow + ", {1}", [so, str(lit)], defs=[so], release=rel)
            P.add(ins, after=after, pre=pre); out.append(ins)
            ins = Ins("dma", "buffer_load_dwordx4 {0}, " + srd + ", {1} offen offset:{2} lds", [DMAV, so, str(io)],
                      uses=[DMAV, so, M0], release=rel, deadline=release + step * i + 12)
            P.add(ins, after=after, pre=pre); out.append(ins)
            st["dmas"].append(ins)
        return out

    pre_text = []
    for ins in dma_stage(stages[0], [], 0, pre=True): pre_text.append(ins)
    for s2 in range(6):
        for tb in range(4):
            for s in (2 * s2, 2 * s2 + 1):
                ins = Ins("vld", "buffer_load_dwordx4 {0}, {1}, " + S_X + ", 0 offen offset:{2} nt", [X[tb][s], XOFF[tb], str(64 * s)],
                          defs=[X[tb][s]], uses=[XOFF[tb]])
                P.add(ins, pre=True); pre_text.append(ins)

    ring = [0]
    def read_frag(st, b, s, after):
        w = WR[ring[0] % 6]; ring[0] += 1
        for e in range(2):
            if st["wo"]:
                off = st["slot"] + 1024 * (2 * s + e) + 8 * b; ad = RDO
            else:
                off = st["slot"] + 2048 * s + 256 * e; ad = RDA[b]
            ins = Ins("dsr", "ds_read_b64_tr_b16 {0}, {1} offset:{2}", [w[2 * e:2 * e + 2], ad, str(off)],
                      defs=[w[2 * e:2 * e + 2]], uses=[ad])
            P.add(ins, after=after); st["reads"].append(ins)
        return w

    def barrier(st):
        i = st["i"]
        b = Ins("bar", "s_barrier")
        prev = stages[i - 1]["reads"] if i > 0 else []
        b.needs = list(prev) + list(st["dmas"])
        P.add(b, main=True, after=[(r, 4) for r in prev[-4:]] + list(prev) + list(st["dmas"]))
        st["bar"] = b
        if i + 1 < len(stages):
            nxt = stages[i + 1]
            if nxt["wo"] and not st["wo"]:
                t1 = T("d"); t2 = T("d")
                valu("v_lshrrev_b32 {0}, 2, {1}", [t1, LANE], [t1], [LANE], release=slotn[0])
                valu("v_mul_u32_u24 {0}, 768, {1}", [t1, t1], [t1], [t1], release=slotn[0])
                valu("v_and_b32 {0}, 3, {1}", [t2, LANE], [t2], [LANE], release=slotn[0])
                ins = valu("v_lshl_add_u32 {0}, {1}, 4, {2}", [DMAV, t2, t1], [DMAV], [t2, t1], release=slotn[0])
            dma_stage(nxt, [b], slotn[0] + 1)
        return b

    QF = {}; KF = {}; VF = {}; SS = {}; PF = {}; OF = {}
    OUTP = {}

    def cvt2(dst, lo, acc, release=0):
        o = []
        o.append(valu("v_cvt_pk_bf16_f32 {0}, {1}, {2}", [dst[lo], acc[0], acc[1]], [dst[lo]], [acc[0], acc[1]], release=release))
        o.append(valu("v_cvt_pk_bf16_f32 {0}, {1}, {2}", [dst[lo + 1], acc[2], acc[3]], [dst[lo + 1]], [acc[2], acc[3]], release=release))
        return o

    def bias_reads(h):
        for kb in range(4):
            for qb in range(4):
                q = Q(f"S{h}_{kb}{qb}", "v"); SS[h, kb, qb] = q
                off = h * 2880 + (qb - kb + 3) * 96
                P.add(Ins("dsr", "ds_read_b128 {0}, {1} offset:{2}", [q, BIAS, str(off)], defs=[q], uses=[BIAS],
                          release=slotn[0]))

    def s_part(h, g):
        for kb in range(4):
            for qb in range(4):
                mfma(SS[h, kb, qb], KF[h, g, kb], QF[h, g, qb])

    def xreduce(vals, op, rel):
        m0, m1, m2, m3 = vals
        def perm(n, a, b): return valu(f"v_permlane{n}_swap_b32 {{0}}, {{1}}", [a, b], [a, b], [a, b], kind="perm", release=rel)
        perm(32, m0, m1); x = T("x"); valu(op + " {0}, {1}, {2}", [x, m0, m1], [x], [m0, m1], release=rel)
        perm(32, m2, m3); y = T("y"); valu(op + " {0}, {1}, {2}", [y, m2, m3], [y], [m2, m3], release=rel)
        perm(16, x, y); z = T("z"); valu(op + " {0}, {1}, {2}", [z, x, y], [z], [x, y], release=rel)
        return z
    def xbroadcast(z, rel):
        def perm(n, a, b): return valu(f"v_permlane{n}_swap_b32 {{0}}, {{1}}", [a, b], [a, b], [a, b], kind="perm", release=rel)
        def mov(d, s_): return valu("v_mov_b32 {0}, {1}", [d, s_], [d], [s_], release=rel)
        a = z; b = T("b"); mov(b, a); perm(16, a, b)
        a2 = T("a"); mov(a2, a); perm(32, a, a2)
        b2 = T("b"); mov(b2, b); perm(32, b, b2)
        return [a, a2, b, b2]

    def softmax(h, r0, r1):
        n_total = 361
        cnt = [0]
        def rel():
            cnt[0] += 1
            return int(r0 + (r1 - r0) * cnt[0] / n_total)
        S = lambda kb, qb: SS[h, kb, qb]
        ms = []
        for qb in range(4):
            same = [2 * (qb >> 1), 2 * (qb >> 1) + 1]; diff = [k for k in range(4) if k not in same]
            parts = []
            for ks, mk in ((same, VMS), (diff, VMD)):
                t = T("m"); e = [S(ks[0], qb)[r] for r in range(4)] + [S(ks[1], qb)[r] for r in range(4)]
                valu("v_max3_f32 {0}, {1}, {2}, {3}", [t, e[0], e[1], e[2]], [t], e[0:3], release=rel())
                valu("v_max3_f32 {0}, {0}, {1}, {2}", [t, e[3], e[4]], [t], [t, e[3], e[4]], release=rel())
                valu("v_max3_f32 {0}, {0}, {1}, {2}", [t, e[5], e[6]], [t], [t, e[5], e[6]], release=rel())
                valu("v_max_f32 {0}, {0}, {1}", [t, e[7]], [t], [t, e[7]], release=rel())
                valu("v_add_f32 {0}, {0}, {1}", [t, mk], [t], [t, mk], release=rel())
                parts.append(t)
            valu("v_max_f32 {0}, {0}, {1}", [parts[0], parts[1]], [parts[0]], parts, release=rel())
            ms.append(parts[0])
        r = rel(); z = xreduce(ms, "v_max_f32", r); [rel() for _ in range(5)]
        r = rel(); mb = xbroadcast(z, r); [rel() for _ in range(5)]
        As = []; Ad = []
        for qb in range(4):
            a = T("A"); valu("v_fma_f32 {0}, -{1}, " + S_C + ", {2}", [a, mb[qb], CMS], [a], [mb[qb], CMS], release=rel()); As.append(a)
            a = T("A"); valu("v_fma_f32 {0}, -{1}, " + S_C + ", {2}", [a, mb[qb], CMD], [a], [mb[qb], CMD], release=rel()); Ad.append(a)
        ls = []
        for qb in range(4):
            l = [T("l"), T("l")]; n = 0
            for kb in range(4):
                a = As[qb] if (kb >> 1) == (qb >> 1) else Ad[qb]
                for r_ in range(4):
                    e = S(kb, qb)[r_]
                    valu("v_fma_f32 {0}, {0}, " + S_C + ", {1}", [e, a], [e], [e, a], release=rel())
                    valu("v_exp_f32 {0}, {0}", [e], [e], [e], kind="trans", release=rel())
                for r_ in (0, 2):
                    e0 = S(kb, qb)[r_]; e1 = S(kb, qb)[r_ + 1]; t = l[r_ >> 1]
                    if kb == 0:
                        valu("v_add_f32 {0}, {1}, {2}", [t, e0, e1], [t], [e0, e1], release=rel())
                    else:
                        valu("v_add_f32 {0}, {0}, {1}", [t, e0], [t], [t, e0], release=rel())
                        valu("v_add_f32 {0}, {0}, {1}", [t, e1], [t], [t, e1], release=rel())
            valu("v_add_f32 {0}, {0}, {1}", [l[0], l[1]], [l[0]], l, release=rel())
            ls.append(l[0])
        r = rel(); z = xreduce(ls, "v_add_f32", r); [rel() for _ in range(5)]
        valu("v_rcp_f32 {0}, {0}", [z], [z], [z], kind="trans", release=rel())
        r = rel(); rb = xbroadcast(z, r); [rel() for _ in range(5)]
        for qb in range(4):
            for k2 in range(2):
                pf = Q(f"PF{h}_{k2}{qb}"); PF[h, k2, qb] = pf
                for half in range(2):
                    s_ = S(2 * k2 + half, qb)
                    for r_ in range(4):
                        valu("v_mul_f32 {0}, {0}, {1}", [s_[r_], rb[qb]], [s_[r_]], [s_[r_], rb[qb]], release=rel())
                    valu("v_cvt_pk_bf16_f32 {0}, {1}, {2}", [pf[2 * half], s_[0], s_[1]], [pf[2 * half]], [s_[0], s_[1]], release=rel())
                    valu("v_cvt_pk_bf16_f32 {0}, {1}, {2}", [pf[2 * half + 1], s_[2], s_[3]], [pf[2 * half + 1]], [s_[2], s_[3]], release=rel())

    def pv(h):
        for k3 in range(3):
            for tb in range(4):
                OF[h, k3, tb] = Q(f"OF{h}_{k3}{tb}")
        for nb in range(6):
            accs = []
            for qb in range(4):
                a = Q(f"accO{h}_{nb}{qb}")
                mfma(a, VF[h, nb, 0], PF[h, 0, qb], first=True)
                mfma(a, VF[h, nb, 1], PF[h, 1, qb])
                accs.append(a)
            for qb in range(4):
                cvt2(OF[h, nb >> 1, qb], 2 * (nb & 1), accs[qb])
                if h < 2 and (nb & 1):
                    of = OF[h, nb >> 1, qb]
                    off = ((h * 3 + (nb >> 1)) * 4 + qb) * 1024
                    P.add(Ins("dsw", "ds_write_b128 {0}, {1} offset:{2}", [OLDS, of, str(off)], uses=[OLDS, of], deadline=slotn[0] + 40))

    owr = {}
    def o_readback():
        for h in range(2):
            for k3 in range(3):
                for tb in range(4):
                    off = ((h * 3 + k3) * 4 + tb) * 1024
                    d = X[tb][3 * h + k3]
                    w = [i for i in P.ins if i.kind == "dsw"]
                    P.add(Ins("dsr", "ds_read_b128 {0}, {1} offset:{2}", [d, OLDS, str(off)], defs=[d], uses=[OLDS]), after=w)

    def bop(st, tb, s):
        if st["kind"] != "O": return X[tb][s]
        if s < 6: return X[tb][s]
        return OF[2 + (s - 6) // 3, (s - 6) % 3, tb]

    barrier(stages[0])
    inserts = {}
    for st in stages:
        i = st["i"]; k = st["kind"]; h = st["h"]; g = st["g"]
        if k == "K" and g == 0: inserts[i, 0, 2] = (lambda h=h: bias_reads(h))
        if k == "K" and g >= 1: inserts[i, 0, 3] = (lambda h=h, g=g: s_part(h, g - 1))
        if k == "V" and g == 0:
            def f(h=h):
                s_part(h, 2)
                span = (288 - 24 + 240) if h < 3 else 250
                softmax(h, slotn[0] + 8, slotn[0] + span)
            inserts[i, 0, 3] = f
        if k == "Q" and g == 2 and h > 0: inserts[i, 1, 0] = (lambda h=h: pv(h - 1))
        if k == "O" and g == 0:
            def f():
                pv(3); o_readback()
            inserts[i, 0, 0] = f
    nst = len(stages)
    pairs = [(st, b, pp) for st in stages for b in range(2) for pp in range(6)]
    frags = {}
    def mk_reads(Pi):
        st, b, pp = pairs[Pi]
        frags[Pi] = [read_frag(st, b, 2 * pp, [st["bar"]]), read_frag(st, b, 2 * pp + 1, [st["bar"]])]
    mk_reads(0); mk_reads(1)
    acc = None
    for Pi, (st, b, pp) in enumerate(pairs):
        i = st["i"]; k = st["kind"]; h = st["h"]; g = st["g"]
        if pp == 0: acc = [Q(f"acc{i}_{b}{tb}") for tb in range(4)]
        if (i, b, pp) in inserts: inserts[i, b, pp]()
        fr = frags[Pi]
        P.add(Ins("wait", "", uses=fr), main=True)
        for tb in range(4):
            for j in range(2):
                s = 2 * pp + j
                a_ = bop(st, tb, s)
                if k == "V": mfma(acc[tb], a_, fr[j], first=(pp == 0 and j == 0))
                else: mfma(acc[tb], fr[j], a_, first=(pp == 0 and j == 0))
            if tb == 1 and Pi + 2 < len(pairs):
                st2, b2, pp2 = pairs[Pi + 2]
                if b2 == 0 and pp2 == 0: barrier(st2)
                mk_reads(Pi + 2)
        if pp != 5: continue
        for tb in range(4):
            if k == "Q":
                if b == 0: QF[h, g, tb] = Q(f"QF{h}_{g}{tb}")
                cvt2(QF[h, g, tb], 2 * b, acc[tb])
            elif k == "K":
                if b == 0: KF[h, g, tb] = Q(f"KF{h}_{g}{tb}")
                cvt2(KF[h, g, tb], 2 * b, acc[tb])
            elif k == "V":
                nb = 2 * g + b
                if (tb & 1) == 0: VF[h, nb, tb >> 1] = Q(f"VF{h}_{nb}{tb>>1}")
                cvt2(VF[h, nb, tb >> 1], 2 * (tb & 1), acc[tb])
            else:
                if b == 0: OUTP[g, tb] = Q(f"out{g}_{tb}")
                cvt2(OUTP[g, tb], 2 * b, acc[tb])
                if b == 1:
                    o = OUTP[g, tb]
                    P.add(Ins("vst", "buffer_store_dwordx4 {0}, {1}, " + S_OUT + ", 0 offen offset:{2}", [o, XOFF[tb], str(64 * g)],
                              uses=[o, XOFF[tb]], deadline=slotn[0] + 30))
    return P, pre_text, stages


def emit(cfg, path):
    P, pre_text, stages = build(cfg)
    P.schedule()
    vq = list(range(32, 256, 4)); aq = list(range(216, 256, 4)); vs = list(range(16, 32))
    P.allocate(vq, aq, vs)
    body = P.finalize()
    L = []
    A = L.append
    A(f"; @launch grid=(256,1,1) block=(256,1,1) lds={LDS_TOTAL}")
    A('.amdgcn_target "amdgcn-amd-amdhsa--gfx950"')
    A(".text")
    A(f".globl {NAME}\n.p2align 8\n.type {NAME},@function\n{NAME}:")
    pro = prologue(cfg)
    L += pro
    npre_vm = sum(1 for i in pre_text if i.kind in ASYNC_VM)
    if cfg.code_prefetch:
        A("s_getpc_b64 s[44:45]")
        A("L_pc:")
        A("s_lshr_b32 s41, s2, 3")
        A("s_lshl_b32 s41, s41, 2")
        A("s_add_u32 s41, s41, s36")
        A("s_lshl_b32 s41, s41, 10")
        A("v_lshlrev_b32 v62, 4, v1")
        A("v_add_u32 v62, s41, v62")
        A("v_min_u32 v62, L_end-L_pc-16, v62")
        A("global_load_dwordx4 v[68:71], v62, s[44:45]")
        npre_vm += 0
    for i in pre_text:
        t = i.text()
        if i.kind == "dma": A("s_nop 0") if False else None
        A(t)
    L += prologue2(cfg, npre_vm + (1 if cfg.code_prefetch else 0))
    L += body
    A("L_done:")
    A("s_endpgm")
    A("L_end:")
    A('.section .rodata,"a"\n.p2align 6')
    A(f".amdhsa_kernel {NAME}")
    A("  .amdhsa_next_free_vgpr 512\n  .amdhsa_next_free_sgpr 96\n  .amdhsa_accum_offset 256")
    A("  .amdhsa_group_segment_fixed_size 0\n  .amdhsa_kernarg_size 72\n  .amdhsa_user_sgpr_count 2")
    A("  .amdhsa_user_sgpr_kernarg_segment_ptr 1\n  .amdhsa_system_sgpr_workgroup_id_x 1")
    A(".end_amdhsa_kernel")
    txt = "\n".join(L) + "\n"
    open(path, "w").write(txt)
    print(f"; wrote {path}: {len(txt)} bytes", file=sys.stderr)
    return P

if __name__ == "__main__":
    cfg = Cfg()
    emit(cfg, sys.argv[1] if len(sys.argv) > 1 else "standalone__window_attn_swin__vision.s")
```

```python
import heapq, sys
from collections import defaultdict

class VR:
    __slots__ = ("name", "n", "cls", "phys", "pcls", "first", "last", "fixed")
    def __init__(s, name, n, cls="v", phys=None):
        s.name = name; s.n = n; s.cls = cls
        s.phys = phys; s.pcls = cls[0] if phys is not None else None
        s.first = None; s.last = None; s.fixed = phys is not None
    def __getitem__(s, key):
        if isinstance(key, slice):
            return R(s, key.start, key.stop - key.start)
        return R(s, key, 1)
    def all(s): return R(s, 0, s.n)
    def __repr__(s): return f"VR({s.name})"

class R:
    __slots__ = ("vr", "lo", "cnt")
    def __init__(s, vr, lo, cnt): s.vr = vr; s.lo = lo; s.cnt = cnt
    def elems(s): return [(s.vr, s.lo + i) for i in range(s.cnt)]
    def txt(s):
        p = s.vr.phys + s.lo
        c = s.vr.pcls
        return f"{c}{p}" if s.cnt == 1 else f"{c}[{p}:{p + s.cnt - 1}]"
    def pel(s): return [(s.vr.pcls, s.vr.phys + s.lo + i) for i in range(s.cnt)]

def rr(x):
    return x.all() if isinstance(x, VR) else x

class Ins:
    __slots__ = ("kind", "fmt", "ops", "defs", "uses", "after", "release", "deadline", "cost", "idx", "preds", "succs",
                 "emitted", "eslot", "pos", "main", "dl", "tag", "needs", "npred", "order", "cuses", "stage")
    def __init__(s, kind, fmt, ops=(), defs=(), uses=(), release=0, deadline=None, tag=None, cuses=()):
        s.kind = kind; s.fmt = fmt; s.ops = [rr(o) if isinstance(o, (VR, R)) else o for o in ops]
        s.defs = [rr(d) for d in defs]; s.uses = [rr(u) for u in uses]; s.cuses = [rr(u) for u in cuses]
        s.after = []; s.release = release; s.deadline = deadline; s.tag = tag
        s.cost = {"trans": 2, "wait": 1, "nop": 0}.get(kind, 1)
        s.preds = []; s.succs = []; s.emitted = False; s.eslot = None; s.pos = None; s.main = False; s.dl = None
        s.needs = []
        s.stage = None
    def text(s):
        return s.fmt.format(*[o.txt() if isinstance(o, R) else o for o in s.ops])

ASYNC_LGKM = ("dsr", "dsw")
ASYNC_VM = ("vld", "dma", "vst")

def lat_raw(p, c):
    if p.kind == "dsr": return 8
    if p.kind == "vld": return 0
    if p.kind == "mfma":
        if c.kind == "mfma": return 0
        return 8
    if p.kind in ("valu", "trans"):
        if c.kind == "mfma": return 2
        if c.kind == "perm": return 2
        if p.kind == "trans": return 1
        return 0
    if p.kind == "perm":
        if c.kind == "mfma" or c.kind == "perm": return 2
        return 0
    return 0

class Prog:
    def __init__(s):
        s.ins = []; s.main = []; s.vrs = []
        s.lastw = {}; s.readers = defaultdict(list); s.pre = []
        s.urgent = 3; s.backlog = 5
    def vr(s, name, n, cls="v", phys=None):
        v = VR(name, n, cls, phys); s.vrs.append(v); return v
    def add(s, ins, main=False, after=(), pre=False):
        ins.idx = len(s.ins); ins.main = main
        s.ins.append(ins)
        if pre: s.pre.append(ins)
        if main:
            ins.order = len(s.main); s.main.append(ins)
        deps = {}
        def dep(p, lat):
            if p is ins: return
            deps[p] = max(deps.get(p, -1), lat)
        for u in ins.uses + ins.cuses:
            for e in u.elems():
                w = s.lastw.get(e)
                if w is not None: dep(w, lat_raw(w, ins))
        for d in ins.defs:
            for e in d.elems():
                w = s.lastw.get(e)
                if w is not None:
                    dep(w, 0 if (w.kind == "mfma" and ins.kind == "mfma") else (8 if w.kind == "mfma" else 0))
                for r in s.readers[e]:
                    dep(r, 0)
        for a in after:
            if isinstance(a, tuple): dep(a[0], a[1])
            else: dep(a, 0)
        for u in ins.uses + ins.cuses:
            for e in u.elems(): s.readers[e].append(ins)
        for d in ins.defs:
            for e in d.elems():
                s.lastw[e] = ins; s.readers[e] = []
        for p, l in deps.items():
            ins.preds.append((p, l)); p.succs.append((ins, l))
        return ins

    def schedule(s, budget_fn=None, verbose=True):
        main = s.main
        slot = 0
        for m in main:
            m.dl = slot
            if m.kind == "mfma": slot += 1
        nslots = slot
        for i in reversed(s.ins):
            if i.main: continue
            d = i.deadline if i.deadline is not None else nslots + 1000
            for c, l in i.succs:
                d = min(d, c.dl - l)
            i.dl = d
        for i in s.ins: i.npred = len(i.preds)
        for i in s.pre:
            i.emitted = True; i.eslot = 0
            for c, l in i.succs: c.npred -= 1
        out = []
        ready = []
        pending = []
        cur = [0]
        forced = [0]
        def earliest(i):
            e = i.release
            for p, l in i.preds: e = max(e, p.eslot + l)
            return e
        def emit(i):
            assert not i.emitted, i.fmt
            i.emitted = True; i.eslot = cur[0]; i.pos = len(out); out.append(i)
            for c, l in i.succs:
                c.npred -= 1
                if c.npred == 0 and not c.main:
                    heapq.heappush(pending, (earliest(c), c.dl, c.idx, c))
        for i in s.ins:
            if i.npred == 0 and not i.main and not i.emitted:
                heapq.heappush(pending, (earliest(i), i.dl, i.idx, i))
        def force(i):
            for p, l in sorted(i.preds, key=lambda x: x[0].idx):
                if not p.emitted:
                    assert not p.main, f"main order violates dependence: {p.fmt} needed by {i.fmt}"
                    force(p); forced[0] += 1; emit(p)
        dens = defaultdict(int)
        nmain = len(main)
        for mi, m in enumerate(main):
            force(m)
            emit(m)
            if m.kind == "mfma":
                cur[0] += 1
            nxt = main[mi + 1] if mi + 1 < nmain else None
            if m.kind != "mfma" and nxt is not None and nxt.kind != "mfma":
                continue
            used = 0
            if m.kind != "mfma": continue
            k = mi + 1
            while k < nmain and main[k].kind != "mfma":
                used += 1 if main[k].kind in ("wait", "salu") else 2
                k += 1
            b = (budget_fn(cur[0]) if budget_fn else 2) - used
            first = True
            while b > 0:
                while pending and pending[0][0] <= cur[0]:
                    e, d, ix, i = heapq.heappop(pending)
                    if not i.emitted: heapq.heappush(ready, (i.dl, i.idx, i))
                while ready and ready[0][2].emitted: heapq.heappop(ready)
                if not ready: break
                top = ready[0][2]
                if not (first and used == 0):
                    if not (top.dl - cur[0] <= s.urgent or len(ready) >= s.backlog): break
                pick = None; stash = []
                while ready:
                    c = heapq.heappop(ready)
                    if c[2].emitted: continue
                    if c[2].cost <= b or (first and used == 0): pick = c; break
                    stash.append(c)
                    if len(stash) > 6: break
                for c in stash: heapq.heappush(ready, c)
                if pick is None: break
                emit(pick[2]); b -= pick[2].cost; dens[cur[0]] += pick[2].cost; first = False
        rest = [i for i in s.ins if not i.emitted]
        for i in rest:
            if not i.emitted:
                force(i); emit(i)
        s.out = out; s.nslots = nslots
        if verbose:
            print(f"; scheduled {len(out)} instrs, {nslots} mfma slots, forced {forced[0]}, leftover {len(rest)}", file=sys.stderr)
        return out

    def allocate(s, vquads, aquads, vsingles, verbose=True, releasable=()):
        for v in s.vrs: v.first = v.last = None
        for p, i in enumerate(s.out):
            for r in i.defs + i.uses + i.cuses:
                v = r.vr
                if v.first is None: v.first = p
                v.last = p
        ev = [v for v in s.vrs if not v.fixed and v.first is not None]
        ev.sort(key=lambda v: v.first)
        freeV = list(vquads); freeA = list(aquads); freeS = list(vsingles)
        live = []
        for k, v in enumerate(releasable):
            if v.n == 4:
                heapq.heappush(live, (v.last, -1 - k, v))
            elif v.first is None: freeS.append(v.phys)
            else:
                v.name = "t_" + v.name
                heapq.heappush(live, (v.last, -1 - k, v))
        peakV = peakA = peakS = 0
        nV, nA, nS = len(freeV), len(freeA), len(freeS)
        for k, v in enumerate(ev):
            while live and live[0][0] < v.first:
                _, _, o = heapq.heappop(live)
                if o.n < 4 and o.pcls == "v" and o.name.startswith("t_"): freeS.append(o.phys)
                elif o.pcls == "v": freeV.append(o.phys)
                else: freeA.append(o.phys)
            if v.name.startswith("t_"):
                assert v.n == 1
                if not freeS: raise RuntimeError(f"out of single regs at pos {v.first} for {v.name}")
                v.phys = freeS.pop(0); v.pcls = "v"
            else:
                assert v.n == 4, v.name
                order = {"v": "v", "a": "a", "va": "va", "av": "av"}[v.cls]
                done = False
                for c in order:
                    fl = freeV if c == "v" else freeA
                    if fl:
                        v.phys = fl.pop(0); v.pcls = c; done = True; break
                if not done:
                    names = sorted((o.name for _, _, o in live))
                    raise RuntimeError(f"out of {v.cls} quads at pos {v.first} (slot {s.out[v.first].eslot}) for {v.name}; live: {names}")
            heapq.heappush(live, (v.last, k, v))
            peakV = max(peakV, nV - len(freeV)); peakA = max(peakA, nA - len(freeA)); peakS = max(peakS, nS - len(freeS))
        if verbose: print(f"; alloc peak: V quads {peakV}/{nV}, A quads {peakA}/{nA}, singles {peakS}/{nS}", file=sys.stderr)

    def finalize(s, lgkm0=(), vm0=(), verbose=True):
        lg = [i for i in s.pre if i.kind in ASYNC_LGKM]; vm = [i for i in s.pre if i.kind in ASYNC_VM]
        done = set()
        lastw = {}
        for i in s.pre:
            for r in i.defs:
                for e in r.pel(): lastw[e] = i
        res = []
        nwait = 0
        def need(prods):
            nonlocal lg, vm, nwait
            nl = None; nv = None
            for p in prods:
                if p in done: continue
                if p in lg:
                    k = len(lg) - 1 - lg.index(p); nl = k if nl is None else min(nl, k)
                elif p in vm:
                    k = len(vm) - 1 - vm.index(p); nv = k if nv is None else min(nv, k)
            parts = []
            if nv is not None:
                nv = min(nv, 63); parts.append(f"vmcnt({nv})")
                for p in vm[:len(vm) - nv]: done.add(p)
                vm = vm[len(vm) - nv:] if nv > 0 else []
            if nl is not None:
                nl = min(nl, 15); parts.append(f"lgkmcnt({nl})")
                for p in lg[:len(lg) - nl]: done.add(p)
                lg = lg[len(lg) - nl:] if nl > 0 else []
            if parts:
                res.append(("wait", "s_waitcnt " + " ".join(parts), None)); nwait += 1
        for i in s.out:
            prods = list(i.needs)
            for r in i.uses + i.cuses + i.defs:
                for e in r.pel():
                    p = lastw.get(e)
                    if p is not None and p not in done: prods.append(p)
            need(prods)
            if i.kind != "wait":
                res.append((i.kind, i.text(), i))
            for r in i.defs:
                for e in r.pel():
                    if i.kind in ("dsr", "vld"): lastw[e] = i
                    else: lastw.pop(e, None)
            if i.kind in ASYNC_LGKM: lg.append(i)
            if i.kind in ASYNC_VM: vm.append(i)
        fin = []
        hist = []
        state = 0
        wr = {}
        crd = {}
        strd = {}
        m0w = -10
        nnop = 0
        for kind, text, i in res:
            req = 0
            if i is not None:
                def chk(e, n):
                    nonlocal req
                    w = wr.get(e)
                    if w is not None:
                        req = max(req, n - (state - w[0] - 1))
                for r in i.uses + i.cuses:
                    isC = any(r is c for c in i.cuses)
                    for e in r.pel():
                        w = wr.get(e)
                        if w is None: continue
                        wk = w[1]
                        if wk == "mfma":
                            if i.kind == "mfma":
                                if not isC: chk(e, 8)
                                else:
                                    if w[2] != (r.vr.pcls, r.vr.phys + r.lo, r.cnt): chk(e, 6)
                            else: chk(e, 8)
                        elif wk in ("valu", "trans", "perm"):
                            if i.kind == "mfma": chk(e, 2)
                            elif i.kind == "perm": chk(e, 2)
                            elif wk == "trans" and i.kind in ("valu", "perm", "dsw", "vst"): chk(e, 1)
                for r in i.defs:
                    for e in r.pel():
                        w = wr.get(e)
                        if w is not None and w[1] == "mfma" and i.kind != "mfma": chk(e, 8)
                        if w is not None and w[1] == "mfma" and i.kind == "mfma":
                            if w[2] != (r.vr.pcls, r.vr.phys + r.lo, r.cnt): chk(e, 8)
                        if i.kind in ("valu", "trans", "perm"):
                            c = crd.get(e)
                            if c is not None: req = max(req, 3 - (state - c - 1))
                            c = strd.get(e)
                            if c is not None: req = max(req, 2 - (state - c - 1))
                        if i.kind == "perm":
                            if w is not None and w[1] in ("valu", "trans", "perm"): chk(e, 2)
                if i.kind == "dma" and m0w >= 0: req = max(req, 1 - (state - m0w - 1))
            if req > 0:
                fin.append(f"s_nop {req - 1}"); state += req; nnop += 1
            fin.append(text)
            if i is not None:
                for r in i.defs:
                    for e in r.pel():
                        if i.kind in ("mfma", "valu", "trans", "perm"):
                            wr[e] = (state, i.kind, (r.vr.pcls, r.vr.phys + r.lo, r.cnt))
                        else: wr.pop(e, None)
                for r in i.cuses:
                    for e in r.pel(): crd[e] = state
                if i.kind in ("vst", "dsw"):
                    for r in i.uses:
                        if r.cnt >= 3:
                            for e in r.pel(): strd[e] = state
                if i.kind == "salu" and " m0," in text: m0w = state
            state += 1
        if verbose:
            gaps = []; c = 0
            for t in fin:
                if t.startswith("v_mfma"): gaps.append(c); c = 0
                else: c += 2 if t.startswith(("v_exp", "v_rcp")) else 1
            import collections
            h = collections.Counter(min(g, 6) for g in gaps)
            print("; gap histogram", sorted(h.items()), file=sys.stderr)
            seg = 480
            print("; extra slots (>2) per %d mfma:" % seg, [sum(max(0, g - 2) for g in gaps[k:k + seg]) for k in range(0, len(gaps), seg)], file=sys.stderr)
            print("; fillers per %d mfma:" % seg, [sum(gaps[k:k + seg]) for k in range(0, len(gaps), seg)], file=sys.stderr)
        if verbose: print(f"; finalize: {len(fin)} lines, {nwait} waits, {nnop} nops", file=sys.stderr)
        s.final_lg = lg; s.final_vm = vm
        return fin
```

```python
import sys, math, struct
from sched import *

NAME = "standalone__window_attn_swin__vision_kernel"
def f2u(x): return struct.unpack("<I", struct.pack("<f", x))[0]
SCALE = 96 ** -0.5
LOG2E = 1.4426950408889634
C_EXP = SCALE * LOG2E
INV_SCALE = 1.0 / SCALE
MASKV = -100.0

SLOT = 49152
LDS_O = 2 * SLOT
LDS_TB = LDS_O + 49152
LDS_BOUNCE = LDS_TB + 11520
LDS_PF = LDS_BOUNCE + 4096
LDS_TOTAL = 163840
PITCH_Q = 2304
PITCH_O = 768
QS = 12288

S_X, S_W, S_WO, S_B, S_OUT = "s[16:19]", "s[20:23]", "s[24:27]", "s[28:31]", "s[32:35]"
S_WAVE, S_WQROW, S_WOROW, S_LDSW, S_C = "s36", "s37", "s38", "s39", "s40"

class Cfg:
    code_prefetch = True
    phase1 = True
    x_nodmawait = False
    x_nobar = False
    x_nostore = False
    stamps = None
    urgent = 3
    backlog = 5
    dma_step = 4
    st_step = 10
    st_delay = 52
    sm_span = (400, 420, 420, 380)
    nt_x = True
    xahead = 3
    p1_wstep = 6
    p1_xstart = 8
    p1_xstep = 28
    cvt_dl = 28
    st_flags = ""
    x_wo_same = False
    x_p1_nomfma = False
    x_p1_nodma = False
    rt_stamps = False
    l2pf = True
    pf_stage = 0
    x_wo_nodma = False
    st_pair = True

def prologue(cfg):
    L = []
    A = L.append
    A("s_load_dwordx4 s[4:7], s[0:1], 0")
    A("s_load_dwordx4 s[8:11], s[0:1], 16")
    A("s_load_dwordx2 s[12:13], s[0:1], 48")
    A("s_cmp_ge_u32 s2, 256")
    A("s_cbranch_scc1 L_done")
    A("v_lshrrev_b32 v32, 6, v0")
    A("v_and_b32 v1, 63, v0")
    A("v_readfirstlane_b32 s36, v32")
    A("v_and_b32 v33, 15, v1")
    A("v_lshrrev_b32 v34, 4, v1")
    A("s_nop 1")
    A("s_lshl_b32 s14, s2, 2")
    A("s_add_u32 s14, s14, s36")
    A("s_lshr_b32 s15, s14, 5")
    A("s_and_b32 s14, s14, 31")
    A("s_lshl_b32 s41, s15, 3")
    A("s_add_u32 s41, s41, 4")
    A("s_lshl_b32 s42, s14, 3")
    A("s_add_u32 s42, s42, 4")
    A("v_and_b32 v35, 7, v33")
    A("v_lshrrev_b32 v36, 3, v33")
    A("v_add_u32 v35, s42, v35")
    A("v_and_b32 v35, 255, v35")
    A("s_movk_i32 s43, 768")
    for tb in range(4):
        A(f"v_add_u32 v37, s41, v36")
        if tb: A(f"v_add_u32 v37, {2*tb}, v37")
        A(f"v_and_b32 v37, 255, v37")
        A(f"v_lshl_add_u32 v37, v37, 8, v35")
        A(f"v_mul_lo_u32 v37, v37, s43")
        A(f"v_lshl_add_u32 v{2+tb}, v34, 4, v37")
    A("v_lshrrev_b32 v52, 3, v1")
    A("v_bfe_u32 v53, v1, 4, 1")
    A("s_and_b32 s41, s36, 1")
    A("s_lshl_b32 s41, s41, 1")
    A("v_or_b32 v53, s41, v53")
    A("v_lshlrev_b32 v53, 1, v53")
    A("v_and_b32 v54, 7, v1")
    A("v_xor_b32 v54, v54, v53")
    A("v_lshrrev_b32 v12, 2, v54")
    A("v_and_b32 v54, 3, v54")
    A("v_mul_u32_u24 v52, 2304, v52")
    A("v_lshl_add_u32 v52, v54, 4, v52")
    A("v_lshl_add_u32 v8, v12, 6, v52")
    A("v_mul_u32_u24 v53, 768, v12")
    A("v_add_u32 v16, v52, v53")
    A("s_lshr_b32 s45, s2, 3")
    A("s_lshl_b32 s45, s45, 2")
    A("s_add_u32 s45, s45, s36")
    A("v_min_u32 v38, 179, v0")
    A("v_mul_u32_u24 v39, 21846, v38")
    A("v_lshrrev_b32 v39, 18, v39")
    A("v_mul_u32_u24 v40, 12, v39")
    A("v_sub_u32 v40, v38, v40")
    A("v_mul_u32_u24 v41, 15, v39")
    A("v_add_u32 v41, 11, v41")
    A("v_sub_u32 v41, v41, v40")
    A("v_lshlrev_b32 v41, 3, v41")
    A("v_mul_u32_u24 v42, 48, v39")
    A("v_lshl_add_u32 v42, v40, 2, v42")
    A(f"v_add_u32 v42, {LDS_TB}, v42")
    if cfg.l2pf and cfg.phase1:
        A("v_min_u32 v60, 9, v1")
        A("v_cmp_lt_u32 vcc, 4, v60")
        A("s_nop 1")
        A("v_cndmask_b32 v61, 0, 1, vcc")
        A("v_mul_u32_u24 v62, 5, v61")
        A("v_sub_u32 v60, v60, v62")
        A("v_lshrrev_b32 v62, 1, v60")
        A("v_mul_u32_u24 v62, 6, v62")
        A("v_and_b32 v60, 1, v60")
        A("v_add_u32 v60, v60, v62")
        A("v_lshlrev_b32 v60, 7, v60")
        A("v_mul_u32_u24 v61, 2304, v61")
        A("v_add_u32 v60, v60, v61")
    A("v_lshrrev_b32 v56, 3, v1")
    A("v_and_b32 v57, 6, v56")
    A("v_and_b32 v58, 7, v1")
    A("v_xor_b32 v57, v57, v58")
    A("s_lshl_b32 s42, s14, 3")
    A("s_add_u32 s42, s42, 4")
    A("v_add_u32 v56, s42, v56")
    A("v_and_b32 v56, 255, v56")
    A("v_mul_u32_u24 v56, 768, v56")
    A("v_lshl_add_u32 v24, v57, 4, v56")
    A("s_lshl_b32 s41, s15, 3")
    A("s_add_u32 s41, s41, 4")
    for r in range(8):
        A(f"s_add_u32 s42, s41, {r}")
        A("s_and_b32 s42, s42, 255")
        A(f"s_mul_i32 s{50+r}, s42, 196608")
    A(f"s_mul_i32 s37, s36, {8*PITCH_Q}")
    A(f"s_mul_i32 s38, s36, {8*PITCH_O}")
    A(f"s_mul_i32 s39, s36, {QS}")
    A(f"s_mov_b32 s40, {f2u(C_EXP):#x}")
    A("s_waitcnt lgkmcnt(0)")
    A("s_mov_b32 s16, s4\ns_and_b32 s17, s5, 0xffff\ns_mov_b32 s18, 50331648\ns_mov_b32 s19, 0x20000")
    A("s_sub_u32 s20, s6, 3072\ns_subb_u32 s21, s7, 0\ns_and_b32 s21, s21, 0xffff")
    A(f"s_mov_b32 s22, {884736+3072}\ns_mov_b32 s23, 0x20000")
    A("s_sub_u32 s24, s8, 3072\ns_subb_u32 s25, s9, 0\ns_and_b32 s25, s25, 0xffff")
    A(f"s_mov_b32 s26, {294912+3072}\ns_mov_b32 s27, 0x20000")
    A("s_mov_b32 s28, s10\ns_and_b32 s29, s11, 0xffff\ns_mov_b32 s30, 1800\ns_mov_b32 s31, 0x20000")
    A("s_mov_b32 s32, s12\ns_and_b32 s33, s13, 0xffff\ns_mov_b32 s34, 50331648\ns_mov_b32 s35, 0x20000")
    return L

def prologue2(cfg, nvm_after_rpb):
    L = []
    A = L.append
    A("v_bfe_u32 v52, v1, 2, 2")
    A("v_and_b32 v53, 3, v1")
    A("v_lshlrev_b32 v54, 7, v52")
    A("v_lshl_add_u32 v54, v53, 3, v54")
    A("v_and_b32 v55, 1, v34")
    A("v_lshrrev_b32 v56, 1, v34")
    A("v_lshrrev_b32 v57, 1, v52")
    A("v_lshl_add_u32 v57, v55, 1, v57")
    A("v_lshl_add_u32 v54, v57, 5, v54")
    A(f"v_mul_u32_u24 v57, {QS}, v34")
    A("v_add_u32 v6, v54, v57")
    A("v_xor_b32 v7, 32, v6")
    A("v_xor_b32 v17, 64, v6")
    A("v_xor_b32 v18, 96, v6")
    for k, r in enumerate((6, 7, 17, 18)):
        A(f"v_add_u32 v{19+k}, {LDS_O}, v{r}")
    A("v_and_b32 v58, 7, v33")
    A("v_and_b32 v57, 6, v33")
    A("v_xor_b32 v57, v57, v34")
    A("v_lshlrev_b32 v57, 4, v57")
    A("v_lshl_add_u32 v57, v58, 7, v57")
    A("v_lshl_add_u32 v57, v36, 10, v57")
    A(f"s_add_u32 s41, s39, {SLOT}")
    A("v_add_u32 v25, s41, v57")
    A("v_xor_b32 v26, 64, v25")
    A("v_lshlrev_b32 v15, 4, v1")
    A(f"s_mul_i32 s41, s36, 12288")
    A(f"s_add_u32 s41, s41, {LDS_O}")
    A("v_add_u32 v10, s41, v15")
    A(f"s_lshl_b32 s41, s36, 10")
    A(f"s_add_u32 s41, s41, {LDS_BOUNCE}")
    A("v_add_u32 v15, s41, v15")
    A("v_and_b32 v57, 7, v33")
    A("v_sub_u32 v57, 7, v57")
    A("v_lshl_add_u32 v57, v55, 2, v57")
    A("v_and_b32 v58, 3, v57")
    A("v_sub_u32 v57, v57, v58")
    A("v_mul_u32_u24 v58, 720, v58")
    A("v_lshl_add_u32 v58, v57, 2, v58")
    A("v_sub_u32 v59, v36, v56")
    A("v_add_u32 v59, 1, v59")
    A("v_mul_u32_u24 v59, 48, v59")
    A("v_add_u32 v58, v58, v59")
    A(f"v_add_u32 v9, {LDS_TB}, v58")
    A("v_bfe_u32 v57, v33, 2, 1")
    A("v_xor_b32 v57, v57, v55")
    A("s_cmp_eq_u32 s14, 31")
    A("s_cselect_b32 s41, 1, 0")
    A("v_and_b32 v57, s41, v57")
    A("v_cvt_f32_u32 v58, v57")
    A(f"v_mul_f32 v11, {f2u(MASKV*INV_SCALE):#x}, v58")
    A(f"v_mul_f32 v13, {f2u(MASKV*LOG2E):#x}, v58")
    A("s_cmp_eq_u32 s15, 31")
    A("s_cselect_b32 s41, 1, 0")
    A("v_or_b32 v57, s41, v57")
    A("v_cvt_f32_u32 v58, v57")
    A(f"v_mul_f32 v23, {f2u(MASKV*INV_SCALE):#x}, v58")
    A(f"v_mul_f32 v14, {f2u(MASKV*LOG2E):#x}, v58")
    A(f"s_waitcnt vmcnt({nvm_after_rpb})")
    A(f"s_mov_b32 s41, {f2u(INV_SCALE):#x}")
    for a in range(4):
        for h in range(4):
            src = 44 + 2 * a + (h >> 1)
            t = 60 + (a * 4 + h) % 8
            if h & 1: A(f"v_and_b32 v{t}, 0xffff0000, v{src}")
            else: A(f"v_lshlrev_b32 v{t}, 16, v{src}")
            A(f"v_mul_f32 v{t}, s41, v{t}")
            A(f"ds_write_b32 v42, v{t} offset:{h*2880 + a*720}")
    A("s_waitcnt lgkmcnt(0)")
    return L

def build(cfg):
    P = Prog()
    P.urgent = cfg.urgent; P.backlog = cfg.backlog
    XOFF = [P.vr(f"xoff{t}", 1, "v", 2 + t) for t in range(4)]
    RD = [P.vr("rd0", 1, "v", 6), P.vr("rd1", 1, "v", 7), P.vr("rd2", 1, "v", 17), P.vr("rd3", 1, "v", 18)]
    RDH = [P.vr(f"rdh{k}", 1, "v", 19 + k) for k in range(4)]
    DMAV = P.vr("dmav", 1, "v", 8)
    DMAV768 = P.vr("dmav768", 1, "v", 16)
    BIAS = P.vr("bias", 1, "v", 9)
    OLDS = P.vr("olds", 1, "v", 10)
    VMS = P.vr("vms", 1, "v", 11); VMD = P.vr("vmd", 1, "v", 23)
    VH = P.vr("vh", 1, "v", 12)
    CMS = P.vr("cms", 1, "v", 13); CMD = P.vr("cmd", 1, "v", 14)
    BNC = P.vr("bounce", 1, "v", 15)
    LANE = P.vr("lane", 1, "v", 1)
    XDV = P.vr("xdv", 1, "v", 24)
    XRD = [P.vr("xr0", 1, "v", 25), P.vr("xr1", 1, "v", 26)]
    X = [[P.vr(f"X{t}_{s}", 4, "a", 4 * (t * 12 + s)) for s in range(12)] for t in range(4)]
    M0 = P.vr("m0", 1, "m", 0)
    SOFF = [P.vr("so0", 1, "s", 42), P.vr("so1", 1, "s", 43)]
    tcount = [0]
    def T(n="t"):
        tcount[0] += 1
        return P.vr(f"t_{n}{tcount[0]}", 1, "v")
    qcount = [0]
    def Q(n, cls="v"):
        qcount[0] += 1
        return P.vr(f"{n}#{qcount[0]}", 4, cls)
    slotn = [0]
    def mfma(D, A_, B_, first=False):
        if first:
            i = Ins("mfma", "v_mfma_f32_16x16x32_bf16 {0}, {1}, {2}, 0", [D, A_, B_], defs=[D], uses=[A_, B_])
        else:
            i = Ins("mfma", "v_mfma_f32_16x16x32_bf16 {0}, {1}, {2}, {0}", [D, A_, B_], defs=[D], uses=[A_, B_], cuses=[D])
        if cfg.x_p1_nomfma and slotn[0] < 768: i.fmt = "s_nop 0"
        P.add(i, main=True); slotn[0] += 1
        return i
    def valu(fmt, ops, defs, uses, kind="valu", release=0, deadline=None, after=()):
        return P.add(Ins(kind, fmt, ops, defs=defs, uses=uses, release=release, deadline=deadline), after=after)

    def qcol(kind, h, g): return ({"Q": 0, "K": 768, "V": 1536}[kind] + 192 * h + 64 * g)
    def mk(a, b):
        ca, cb = qcol(*a), qcol(*b)
        if ca < cb: return dict(col=ca, delta=cb - ca, grp=[a, b], order=[0, 1], wo=False)
        return dict(col=cb, delta=ca - cb, grp=[b, a], order=[1, 0], wo=False)
    seq = [(("V",0,2),("Q",1,0)), (("Q",1,1),("Q",1,2)), (("K",1,1),("K",1,2)), (("K",1,0),("V",1,0)), (("V",1,1),("V",1,2)),
           (("Q",2,0),("Q",2,1)), (("Q",2,2),("K",2,2)), (("K",2,0),("K",2,1)), (("V",2,0),("V",2,1)), (("V",2,2),("Q",3,0)),
           (("Q",3,1),("Q",3,2)), (("K",3,1),("K",3,2)), (("K",3,0),("V",3,0)), (("V",3,1),("V",3,2))]
    if not cfg.phase1:
        seq = [(("Q",0,0),("Q",0,1)), (("Q",0,2),("K",0,2)), (("K",0,0),("K",0,1)), (("V",0,0),("V",0,1))] + seq
    stages = [mk(a, b) for a, b in seq]
    for j in range(6):
        stages.append(dict(col=128 * j, delta=64, grp=[("O", None, 2 * j), ("O", None, 2 * j + 1)], order=[0, 1], wo=True))
    for i, st in enumerate(stages):
        st["i"] = i; st["slot"] = ((i + (1 if cfg.phase1 else 0)) & 1) * SLOT; st["dmas"] = []; st["reads"] = []; st["bar"] = None
    cur_delta = [64]

    def dma_one(srd, srow, vo, m0base, lit, io, after, rel, pre, dl):
        out = []
        if m0base is not None:
            ins = Ins("salu", "s_add_u32 m0, " + S_LDSW + ", {0}", [str(m0base)], defs=[M0], release=rel)
            P.add(ins, after=after, pre=pre); out.append(ins)
        so = SOFF[dma_one.n % 2]; dma_one.n += 1
        ins = Ins("salu", "s_add_u32 {0}, " + srow + ", {1}", [so, str(lit)], defs=[so], release=rel)
        P.add(ins, after=after, pre=pre); out.append(ins)
        ins = Ins("dma", "buffer_load_dwordx4 {0}, " + srd + ", {1} offen offset:{2} lds", [vo, so, str(io)],
                  uses=[vo, so, M0], release=rel, deadline=dl)
        P.add(ins, after=after, pre=pre); out.append(ins)
        return out
    dma_one.n = 0

    def dma_stage(st, after, release, pre=False):
        out = []
        pitch = PITCH_O if st["wo"] else PITCH_Q
        srd = S_WO if st["wo"] else S_W
        srow = S_WOROW if st["wo"] else S_WQROW
        if not st["wo"] and st["delta"] != cur_delta[0]:
            d = st["delta"] - cur_delta[0]; cur_delta[0] = st["delta"]
            ins = Ins("valu", "v_mad_i32_i24 {0}, {1}, s44, {0}", [DMAV, VH], defs=[DMAV], uses=[DMAV, VH, SD], release=release)
            i0 = Ins("salu", "s_mov_b32 s44, {0}", [str(d)], defs=[SD], release=release)
            P.add(i0, after=after, pre=pre); P.add(ins, after=after, pre=pre); out += [i0, ins]
        for i in range(12):
            rel = release + cfg.dma_step * i
            io = (i % 4) * 1024
            m0b = st["slot"] + (i // 4) * 4096 if i % 4 == 0 else None
            lit = st["col"] + 32 * i * pitch + 3072 - io
            if st["wo"] and cfg.x_wo_same: lit = 32 * i * pitch + 3072 - io
            if st["wo"] and cfg.x_wo_nodma and st["col"] > 128: continue
            o = dma_one(srd, srow, DMAV, m0b, lit, io, after, rel, pre, rel + 16)
            out += o; st["dmas"].append(o[-1])
        return out
    SD = P.vr("sd", 1, "s", 44)

    pre_text = []
    def xload(tb, s, pre, rel=0, dl=None):
        nt = " nt" if cfg.nt_x else ""
        ins = Ins("vld", "buffer_load_dwordx4 {0}, {1}, " + S_X + ", 0 offen offset:{2}" + nt, [X[tb][s], XOFF[tb], str(64 * s)],
                  defs=[X[tb][s]], uses=[XOFF[tb]], release=rel, deadline=dl)
        P.add(ins, pre=pre)
        return ins

    ringq = []
    def read_frag(addr, off, after, rel, cls, reads):
        w = Q("W", cls)
        extra = []
        if len(ringq) >= 6:
            extra = ringq[-6]["users"]
        rec = {"users": []}; ringq.append(rec)
        for e, o in enumerate(off):
            ins = Ins("dsr", "ds_read_b64_tr_b16 {0}, {1} offset:{2}", [w[2 * e:2 * e + 2], addr[e], str(o)],
                      defs=[w[2 * e:2 * e + 2]], uses=[addr[e]], release=rel + 2 * e)
            P.add(ins, after=list(after) + list(extra)); reads.append(ins)
        return w, rec

    def stamp(i):
        if cfg.stamps and i in cfg.stamps:
            k = cfg.stamps.index(i)
            P.add(Ins("salu", ("s_memrealtime" if cfg.rt_stamps else "s_memtime") + f" s[{58+2*k}:{59+2*k}]"), main=True)
            if k in (0, len(cfg.stamps) - 1):
                r = 88 if k == 0 else 90
                P.add(Ins("salu", f"s_memrealtime s[{r}:{r+1}]"), main=True)

    def barrier(prev_reads, dmas, name):
        b = Ins("bar", "s_barrier")
        b.needs = list(prev_reads) + ([] if (cfg.x_nodmawait and prev_reads) else list(dmas))
        if cfg.x_nobar and prev_reads: b.fmt = "s_nop 0"
        P.add(b, main=True, after=[(r, 4) for r in prev_reads[-4:]] + list(prev_reads) + list(dmas))
        stamp(name)
        return b

    QF = {}; KF = {}; VF = {}; SS = {}; PF = {}; OF = {}; OUTP = {}
    kdone = {h: 0 for h in range(4)}

    def cvt2(dst, lo, acc, release=0, dl=None):
        dl = slotn[0] + cfg.cvt_dl if dl is None else dl
        valu("v_cvt_pk_bf16_f32 {0}, {1}, {2}", [dst[lo], acc[0], acc[1]], [dst[lo]], [acc[0], acc[1]], release=release, deadline=dl)
        valu("v_cvt_pk_bf16_f32 {0}, {1}, {2}", [dst[lo + 1], acc[2], acc[3]], [dst[lo + 1]], [acc[2], acc[3]], release=release, deadline=dl)

    def bias_reads(h, rel):
        n = 0
        for kb in range(4):
            for qb in range(4):
                q = Q(f"S{h}_{kb}{qb}", "v"); SS[h, kb, qb] = q
                off = h * 2880 + (qb - kb + 3) * 96
                P.add(Ins("dsr", "ds_read_b128 {0}, {1} offset:{2}", [q, BIAS, str(off)], defs=[q], uses=[BIAS], release=rel + 2 * n)); n += 1

    def s_part(h, g):
        for kb in range(4):
            for qb in range(4):
                mfma(SS[h, kb, qb], KF[h, g, kb], QF[h, g, qb])

    def xreduce(vals, op, rel):
        m0, m1, m2, m3 = vals
        def perm(n, a, b): return valu(f"v_permlane{n}_swap_b32 {{0}}, {{1}}", [a, b], [a, b], [a, b], kind="perm", release=rel)
        perm(32, m0, m1); x = T("x"); valu(op + " {0}, {1}, {2}", [x, m0, m1], [x], [m0, m1], release=rel)
        perm(32, m2, m3); y = T("y"); valu(op + " {0}, {1}, {2}", [y, m2, m3], [y], [m2, m3], release=rel)
        perm(16, x, y); z = T("z"); valu(op + " {0}, {1}, {2}", [z, x, y], [z], [x, y], release=rel)
        return z
    def xbroadcast(z, rel):
        def perm(n, a, b): return valu(f"v_permlane{n}_swap_b32 {{0}}, {{1}}", [a, b], [a, b], [a, b], kind="perm", release=rel)
        def mov(d, s_): return valu("v_mov_b32 {0}, {1}", [d, s_], [d], [s_], release=rel)
        a = z; b = T("b"); mov(b, a); perm(16, a, b)
        a2 = T("a"); mov(a2, a); perm(32, a, a2)
        b2 = T("b"); mov(b2, b); perm(32, b, b2)
        return [a, a2, b, b2]

    def softmax(h, r0, r1):
        n_total = 361
        cnt = [0]
        def rel():
            cnt[0] += 1
            return int(r0 + (r1 - r0) * cnt[0] / n_total)
        S = lambda kb, qb: SS[h, kb, qb]
        ms = []
        for qb in range(4):
            same = [2 * (qb >> 1), 2 * (qb >> 1) + 1]; diff = [k for k in range(4) if k not in same]
            parts = []
            for ks, mk_ in ((same, VMS), (diff, VMD)):
                t = T("m"); e = [S(ks[0], qb)[r] for r in range(4)] + [S(ks[1], qb)[r] for r in range(4)]
                valu("v_max3_f32 {0}, {1}, {2}, {3}", [t, e[0], e[1], e[2]], [t], e[0:3], release=rel())
                valu("v_max3_f32 {0}, {0}, {1}, {2}", [t, e[3], e[4]], [t], [t, e[3], e[4]], release=rel())
                valu("v_max3_f32 {0}, {0}, {1}, {2}", [t, e[5], e[6]], [t], [t, e[5], e[6]], release=rel())
                valu("v_max_f32 {0}, {0}, {1}", [t, e[7]], [t], [t, e[7]], release=rel())
                valu("v_add_f32 {0}, {0}, {1}", [t, mk_], [t], [t, mk_], release=rel())
                parts.append(t)
            valu("v_max_f32 {0}, {0}, {1}", [parts[0], parts[1]], [parts[0]], parts, release=rel())
            ms.append(parts[0])
        r = rel(); z = xreduce(ms, "v_max_f32", r); [rel() for _ in range(5)]
        r = rel(); mb = xbroadcast(z, r); [rel() for _ in range(5)]
        As = []; Ad = []
        for qb in range(4):
            a = T("A"); valu("v_fma_f32 {0}, -{1}, " + S_C + ", {2}", [a, mb[qb], CMS], [a], [mb[qb], CMS], release=rel()); As.append(a)
            a = T("A"); valu("v_fma_f32 {0}, -{1}, " + S_C + ", {2}", [a, mb[qb], CMD], [a], [mb[qb], CMD], release=rel()); Ad.append(a)
        ls = []
        for qb in range(4):
            l = [T("l"), T("l")]
            for kb in range(4):
                a = As[qb] if (kb >> 1) == (qb >> 1) else Ad[qb]
                for r_ in range(4):
                    e = S(kb, qb)[r_]
                    valu("v_fma_f32 {0}, {0}, " + S_C + ", {1}", [e, a], [e], [e, a], release=rel())
                    valu("v_exp_f32 {0}, {0}", [e], [e], [e], kind="trans", release=rel())
                for r_ in (0, 2):
                    e0 = S(kb, qb)[r_]; e1 = S(kb, qb)[r_ + 1]; t = l[r_ >> 1]
                    if kb == 0:
                        valu("v_add_f32 {0}, {1}, {2}", [t, e0, e1], [t], [e0, e1], release=rel())
                    else:
                        valu("v_add_f32 {0}, {0}, {1}", [t, e0], [t], [t, e0], release=rel())
                        valu("v_add_f32 {0}, {0}, {1}", [t, e1], [t], [t, e1], release=rel())
            valu("v_add_f32 {0}, {0}, {1}", [l[0], l[1]], [l[0]], l, release=rel())
            ls.append(l[0])
        r = rel(); z = xreduce(ls, "v_add_f32", r); [rel() for _ in range(5)]
        valu("v_rcp_f32 {0}, {0}", [z], [z], [z], kind="trans", release=rel())
        r = rel(); rb = xbroadcast(z, r); [rel() for _ in range(5)]
        for qb in range(4):
            for k2 in range(2):
                pf = Q(f"PF{h}_{k2}{qb}"); PF[h, k2, qb] = pf
                for half in range(2):
                    s_ = S(2 * k2 + half, qb)
                    for r_ in range(4):
                        valu("v_mul_f32 {0}, {0}, {1}", [s_[r_], rb[qb]], [s_[r_]], [s_[r_], rb[qb]], release=rel())
                    valu("v_cvt_pk_bf16_f32 {0}, {1}, {2}", [pf[2 * half], s_[0], s_[1]], [pf[2 * half]], [s_[0], s_[1]], release=rel())
                    valu("v_cvt_pk_bf16_f32 {0}, {1}, {2}", [pf[2 * half + 1], s_[2], s_[3]], [pf[2 * half + 1]], [s_[2], s_[3]], release=rel())

    o0w = []
    o1n = [0]
    lastb = [None]
    def pv(h):
        for k3 in range(3):
            for tb in range(4):
                OF[h, k3, tb] = Q(f"OF{h}_{k3}{tb}")
        for nb in range(6):
            accs = []
            for qb in range(4):
                a = Q(f"accO{h}_{nb}{qb}")
                mfma(a, VF[h, nb, 0], PF[h, 0, qb], first=True)
                mfma(a, VF[h, nb, 1], PF[h, 1, qb])
                accs.append(a)
            for qb in range(4):
                cvt2(OF[h, nb >> 1, qb], 2 * (nb & 1), accs[qb])
                if (nb & 1) == 0: continue
                of = OF[h, nb >> 1, qb]
                if h == 0:
                    off = ((nb >> 1) * 4 + qb) * 1024
                    o0w.append(P.add(Ins("dsw", "ds_write_b128 {0}, {1} offset:{2}", [OLDS, of, str(off)], uses=[OLDS, of], deadline=slotn[0] + 40)))
                if h == 1 and o1n[0] < 10:
                    o1n[0] += 1
                    aq = Q(f"O1A_{nb>>1}{qb}", "a")
                    w = P.add(Ins("dsw", "ds_write_b128 {0}, {1}", [BNC, of], uses=[BNC, of], deadline=slotn[0] + 40),
                              after=[lastb[0]] if lastb[0] else [])
                    lastb[0] = P.add(Ins("dsr", "ds_read_b128 {0}, {1}", [aq, BNC], defs=[aq], uses=[BNC], deadline=slotn[0] + 44), after=[w])
                    OF[h, nb >> 1, qb] = aq

    def o_readback(rel):
        n = 0
        for k3 in range(3):
            for tb in range(4):
                off = (k3 * 4 + tb) * 1024
                d = X[tb][k3]
                P.add(Ins("dsr", "ds_read_b128 {0}, {1} offset:{2}", [d, OLDS, str(off)], defs=[d], uses=[OLDS], release=rel + 2 * n), after=o0w); n += 1

    def bop(kind, tb, s):
        if kind != "O" or s < 3: return X[tb][s]
        return OF[s // 3, s % 3, tb]

    def convert(kind, h, g, b, acc):
        for tb in range(4):
            if kind == "Q":
                if b == 0: QF[h, g, tb] = Q(f"QF{h}_{g}{tb}")
                cvt2(QF[h, g, tb], 2 * b, acc[tb])
            elif kind == "K":
                if b == 0: KF[h, g, tb] = Q(f"KF{h}_{g}{tb}")
                cvt2(KF[h, g, tb], 2 * b, acc[tb])
            elif kind == "V":
                nb = 2 * g + b
                if (tb & 1) == 0: VF[h, nb, tb >> 1] = Q(f"VF{h}_{nb}{tb>>1}")
                cvt2(VF[h, nb, tb >> 1], 2 * (tb & 1), acc[tb])
            else:
                if b == 0: OUTP[g, tb] = Q(f"out{g}_{tb}")
                cvt2(OUTP[g, tb], 2 * b, acc[tb])

    tasks = []
    p1 = []
    if cfg.phase1:
        tiles = [dict(col=0, vo=DMAV, grp=[("Q",0,0),("Q",0,1)]), dict(col=128, vo=DMAV768, grp=[("Q",0,2),("K",0,2)]),
                 dict(col=768, vo=DMAV, grp=[("K",0,0),("K",0,1)]), dict(col=1536, vo=DMAV, grp=[("V",0,0),("V",0,1)])]
        def p1pos(u, t, sg):
            j = u % 3
            if j == 0: return 0, 2 * t + sg
            if j == 1: return LDS_O, 2 * t + sg
            return (0, 8 + 2 * t + sg) if t < 2 else (LDS_O, 8 + 2 * (t - 2) + sg)
        def p1_dma(u, after, rel, pre):
            out = []; dm = []
            n = 0
            for t in range(4):
                for sg in range(2):
                    reg, blk = p1pos(u, t, sg)
                    io = (blk % 4) * 1024
                    m0b = reg + (blk // 4) * 4096 if (n % 4 == 0) else None
                    lit = tiles[t]["col"] + (64 * u + 32 * sg) * PITCH_Q + 3072 - io
                    if cfg.x_p1_nodma and u >= 2: continue
                    o = dma_one(S_W, S_WQROW, tiles[t]["vo"], m0b, lit, io, after, rel + cfg.p1_wstep * n, pre, rel + cfg.p1_wstep * n + 8)
                    out += o; dm.append(o[-1]); n += 1
            return out, dm
        xblk = {}; xrd = {}
        def x_dma(n, rel, pre, dl=None):
            u, row = n // 8, n % 8
            aft = xrd.get(n - 12, [])
            nt = " nt" if cfg.nt_x else ""
            so = SOFF[dma_one.n % 2]; dma_one.n += 1
            out = []
            i0 = Ins("salu", "s_add_u32 m0, " + S_LDSW + ", {0}", [str(SLOT + 1024 * (n % 12))], defs=[M0], release=rel)
            i1 = Ins("salu", f"s_add_u32 {{0}}, s{50+row}, {128*u}", [so], defs=[so], release=rel)
            i2 = Ins("dma", "buffer_load_dwordx4 {0}, " + S_X + ", {1} offen" + nt + " lds", [XDV, so], uses=[XDV, so, M0], release=rel, deadline=dl)
            i2.needs = list(aft)
            P.add(i0, after=aft, pre=pre); P.add(i1, after=aft, pre=pre); P.add(i2, after=[(a, 6) for a in aft], pre=pre)
            xblk[n] = i2
            return [i0, i1, i2]
        def x_read(u, tb, rel, main=False):
            n = 8 * u + 2 * tb
            rd = []
            for sg in range(2):
                d = X[tb][2 * u + sg]
                i = Ins("dsr", "ds_read_b128 {0}, {1} offset:{2}", [d, XRD[sg], str(1024 * (n % 12))], defs=[d], uses=[XRD[sg]], release=rel, deadline=rel + 2)
                i.needs = [xblk[n], xblk[n + 1]]
                P.add(i, after=[xblk[n], xblk[n + 1]], main=main); rd.append(i)
            xrd[n] = rd; xrd[n + 1] = rd
            return rd
        def p1_x_step(u, rel):
            if u + 1 >= 6: return
            for tb in range(4):
                r = rel + cfg.p1_xstep * tb
                x_read(u + 1, tb, r)
                for k in range(2):
                    n = 8 * (u + 1) + 2 * tb + k + 12
                    if n < 48: x_dma(n, r + 2, False, r + 10)
        for u in range(6): p1.append(dict(dmas=None, reads=[], bar=None))
        pre_text.append("RPB")
        for n in range(8): pre_text += x_dma(n, 0, True)
        o, dm = p1_dma(0, [], 0, True); pre_text += o; p1[0]["dmas"] = dm
        for n in range(8, 12): pre_text += x_dma(n, 0, True)
        o, dm = p1_dma(1, [], 0, True); pre_text += o; p1[1]["dmas"] = dm
        pre_text.append("PRO2")
        for tb in range(4):
            x_read(0, tb, 0, main=True)
        for tb in range(4):
            for k in range(2):
                x_dma(12 + 2 * tb + k, 0, False, 4 + 4 * tb)
        for u in range(6):
            for t in range(4):
                for m in range(4):
                    kind, h, g = tiles[t]["grp"][m >> 1]
                    reg, b0 = p1pos(u, t, 0); _, b1 = p1pos(u, t, 1)
                    ad = RD[m] if reg == 0 else RDH[m]
                    tasks.append(dict(kind=kind, h=h, g=g, b=m & 1, s0=2 * u, key=("p1", t, m), first=(u == 0), last=(u == 5),
                                      addr=[[ad, ad], [ad, ad]], off=[[1024 * b0, 1024 * b0 + 512], [1024 * b1, 1024 * b1 + 512]],
                                      grp=("p1", u), newgrp=(t == 0 and m == 0), cls="v", acls=("a" if t == 3 else "v")))
    else:
        pre_text += dma_stage(stages[0], [], 0, pre=True)
        pre_text.append("RPB")
        for s2 in range(6):
            for tb in range(4):
                for s in (2 * s2, 2 * s2 + 1): pre_text.append(xload(tb, s, True))
        pre_text.append("PRO2")
    RDO = [P.vr(f"rdo{k}", 1, "v", r) for k, r in enumerate((6, 7, 17, 18))]
    for st in stages:
        i = st["i"]
        order = [(gi, b, pp) for gi in st["order"] for b in range(2) for pp in range(6)]
        if st["wo"] and st["g0"] if False else False: pass
        if st["wo"] and st["grp"][0][2] == 0:
            order = [(gi, b, pp) for gi in range(2) for b in range(2) for pp in range(4)] + [(gi, b, pp) for gi in range(2) for b in range(2) for pp in (4, 5)]
        for n, (gi, b, pp) in enumerate(order):
            kind, h, g = st["grp"][gi]
            m = 2 * gi + b
            if st["wo"]:
                ad = RD[gi + (2 if st["slot"] else 0)]
                off = [[1024 * s + 8 * b, 24576 + 1024 * s + 8 * b] for s in (2 * pp, 2 * pp + 1)]
            else:
                ad = RD[m]
                off = [[st["slot"] + 1024 * s, st["slot"] + 1024 * s + 512] for s in (2 * pp, 2 * pp + 1)]
            tasks.append(dict(kind=kind, h=h, g=g, b=b, s0=2 * pp, key=("st", i, m), first=(pp == 0), last=(pp == 5),
                              addr=[[ad, ad], [ad, ad]], off=off, grp=("st", i), newgrp=(n == 0), cls="av",
                              acls=("a" if (st["wo"] and st["grp"][0][2] == 0 and gi == 1) else "v"), n=n))

    def hooks(tk, idx):
        kind, h, g, b = tk["kind"], tk["h"], tk["g"], tk["b"]
    pend_s = []
    state = dict(pv_at={}, bias_done=set(), sm_done=set(), pv_done=set(), nK={h: 0 for h in range(4)})

    def switch_to_wo(rel, after):
        t1 = T("d"); t2 = T("d"); t3 = T("d")
        valu("v_lshrrev_b32 {0}, 3, {1}", [t1, LANE], [t1], [LANE], release=rel)
        valu("v_mul_u32_u24 {0}, 768, {0}", [t1], [t1], [t1], release=rel)
        valu("v_bfe_u32 {0}, {1}, 4, 1", [t2, LANE], [t2], [LANE], release=rel)
        valu("v_lshlrev_b32 {0}, 2, {0}", [t2], [t2], [t2], release=rel)
        valu("v_and_b32 {0}, 7, {1}", [t3, LANE], [t3], [LANE], release=rel)
        valu("v_xor_b32 {0}, {0}, {1}", [t3, t2], [t3], [t3, t2], release=rel)
        valu("v_lshl_add_u32 {0}, {1}, 4, {2}", [DMAV, t3, t1], [DMAV], [t3, t1], release=rel, after=after)
    def switch_rd_wo(rel):
        t1 = T("e"); t2 = T("e"); t3 = T("e")
        valu("v_lshrrev_b32 {0}, 5, {1}", [t1, LANE], [t1], [LANE], release=rel)
        valu(f"v_mul_u32_u24 {{0}}, {QS}, {{0}}", [t1], [t1], [t1], release=rel)
        valu("v_bfe_u32 {0}, {1}, 2, 3", [t2, LANE], [t2], [LANE], release=rel)
        valu("v_lshl_add_u32 {0}, {1}, 7, {0}", [t1, t2], [t1], [t1, t2], release=rel)
        valu("v_and_b32 {0}, 3, {1}", [t2, LANE], [t2], [LANE], release=rel)
        valu("v_lshl_add_u32 {0}, {1}, 4, {0}", [t1, t2], [t1], [t1, t2], release=rel)
        valu("v_bfe_u32 {0}, {1}, 3, 1", [t3, LANE], [t3], [LANE], release=rel)
        valu("v_lshl_add_u32 {0}, {1}, 6, {2}", [RD[0], t3, t1], [RD[0]], [t3, t1], release=rel)
        valu("v_xor_b32 {0}, 64, {1}", [RD[1], RD[0]], [RD[1]], [RD[0]], release=rel)
        valu(f"v_add_u32 {{0}}, {SLOT}, {{1}}", [RD[2], RD[0]], [RD[2]], [RD[0]], release=rel)
        valu(f"v_add_u32 {{0}}, {SLOT}, {{1}}", [RD[3], RD[1]], [RD[3]], [RD[1]], release=rel)

    def l2_prefetch(after, rel):
        t = T("pf"); t2 = T("pf")
        valu("v_min_u32 {0}, 53, {1}", [t, LANE], [t], [LANE], release=rel)
        valu("v_lshlrev_b32 {0}, 7, {0}", [t], [t], [t], release=rel)
        valu("v_min_u32 {0}, 17, {1}", [t2, LANE], [t2], [LANE], release=rel)
        valu("v_lshlrev_b32 {0}, 7, {0}", [t2], [t2], [t2], release=rel)
        for srd, tt, n in ((S_W, t, 54), (S_WO, t2, 18)):
            so = SOFF[dma_one.n % 2]; dma_one.n += 1
            P.add(Ins("salu", f"s_mov_b32 m0, {LDS_PF}", defs=[M0], release=rel), after=after)
            P.add(Ins("salu", "s_mul_i32 {0}, s45, " + str(n * 128), [so], defs=[so], release=rel), after=after)
            P.add(Ins("salu", "s_add_u32 {0}, {0}, 3072", [so], defs=[so], uses=[so], release=rel), after=after)
            P.add(Ins("dma", "buffer_load_dword {0}, " + srd + ", {1} offen lds", [tt, so], uses=[tt, so, M0], release=rel, deadline=rel + 30), after=after)

    groups = {}
    def group_rec(gid):
        if gid not in groups: groups[gid] = dict(reads=[], bar=None)
        return groups[gid]
    glist = []
    for tk in tasks:
        if tk["newgrp"]: glist.append(tk["grp"])
    def open_group(gid):
        k = glist.index(gid)
        prev = group_rec(glist[k - 1])["reads"] if k > 0 else []
        rec = group_rec(gid)
        if gid[0] == "p1":
            u = gid[1]
            rec["bar"] = barrier(prev, p1[u]["dmas"], ("p", u))
            if u + 2 < 6:
                o, dm = p1_dma(u + 2, [rec["bar"]], slotn[0] + 1, False); p1[u + 2]["dmas"] = dm
                pass
            p1_x_step(u, slotn[0] + cfg.p1_xstart)
            if u == 5:
                allrd = [i for k in sorted(xrd) for i in xrd[k]]
                o = dma_stage(stages[0], [rec["bar"]] + allrd[-8:], slotn[0] + 1)
                for i in o:
                    if i.kind == "dma": i.needs = allrd[-8:]; break
        else:
            st = stages[gid[1]]
            rec["bar"] = barrier(prev, st["dmas"], st["i"])
            i = st["i"]
            if cfg.l2pf and i == cfg.pf_stage: l2_prefetch([rec["bar"]], slotn[0] + 60)
            if i + 1 < len(stages):
                nxt = stages[i + 1]
                if nxt["wo"] and not st["wo"]:
                    switch_to_wo(slotn[0], list(st["dmas"]))
                dma_stage(nxt, [rec["bar"]], slotn[0] + 1)
    frags = {}
    def mk_reads(ti, rel):
        tk = tasks[ti]
        rec = group_rec(tk["grp"])
        if tk["kind"] == "O" and tk["newgrp"] and tk["g"] == 0: switch_rd_wo(slotn[0])
        fr = []
        for j in range(2):
            fr.append(read_frag(tk["addr"][j], tk["off"][j], [rec["bar"]], rel + 4 * j, tk["cls"], rec["reads"]))
        frags[ti] = fr
    open_group(tasks[0]["grp"])
    mk_reads(0, 0); mk_reads(1, 0)
    accs = {}
    stores_pending = []
    for ti, tk in enumerate(tasks):
        kind, h, g, b = tk["kind"], tk["h"], tk["g"], tk["b"]
        while pend_s and pend_s[0][0] <= slotn[0]:
            _, hh, gg = pend_s.pop(0)
            s_part(hh, gg)
            state["nK"][hh] += 1
            if state["nK"][hh] == 3:
                span = cfg.sm_span[hh]
                softmax(hh, slotn[0] + 8, slotn[0] + span)
                state["pv_at"][hh] = slotn[0] + span + 12
        for hh in list(state["pv_at"]):
            ok = slotn[0] >= state["pv_at"][hh] and ("VF", hh) in state
            if hh == 3: ok = (kind == "O" and tk["s0"] == 8 and tk["grp"] == ("st", len(stages) - 6)) and 3 not in state["pv_done"]
            if ok and hh not in state["pv_done"] and tk["first"] | (hh == 3):
                pv(hh); state["pv_done"].add(hh); del state["pv_at"][hh]
        if kind == "K" and h not in state["bias_done"] and not (tk["grp"][0] == "p1"):
            bias_reads(h, slotn[0] + 40); state["bias_done"].add(h)
        if tk["first"]: accs[tk["key"]] = [Q(f"acc{ti}_{tb}", tk["acls"]) for tb in range(4)]
        acc = accs[tk["key"]]
        fr = frags[ti]
        if tk["grp"][0] == "p1" and tk["newgrp"]:
            u = tk["grp"][1]
            P.add(Ins("wait", "", uses=[X[tb][s] for tb in range(4) for s in (2 * u, 2 * u + 1)]), main=True)
        if kind == "O" and tk["newgrp"] and g == 0:
            pass
        P.add(Ins("wait", "", uses=[f[0] for f in fr]), main=True)
        pstart = slotn[0]
        for tb in range(4):
            for j in range(2):
                s = tk["s0"] + j
                a_ = bop(kind, tb, s)
                first = tk["first"] and j == 0
                if kind == "V": i_ = mfma(acc[tb], a_, fr[j][0], first=first)
                else: i_ = mfma(acc[tb], fr[j][0], a_, first=first)
                fr[j][1]["users"].append(i_)
            if tb == 1 and ti + 2 < len(tasks):
                t2 = tasks[ti + 2]
                if t2["newgrp"]:
                    open_group(t2["grp"]); mk_reads(ti + 2, slotn[0])
                else: mk_reads(ti + 2, pstart + 1)
        if not tk["last"]: continue
        if tk["acls"] == "a":
            tmp = []
            for tb in range(4):
                q = Q(f"mv{ti}_{tb}")
                for r in range(4):
                    valu("v_accvgpr_read_b32 {0}, {1}", [q[r], acc[tb][r]], [q[r]], [acc[tb][r]], deadline=slotn[0] + 40)
                tmp.append(q)
            acc = tmp
        convert(kind, h, g, b, acc)
        if kind == "K" and b == 1:
            pend_s.append((slotn[0] + 24, h, g))
            if tk["grp"][0] == "p1" and h not in state["bias_done"]:
                bias_reads(h, slotn[0] + 4); state["bias_done"].add(h)
        if kind == "V" and b == 1:
            state.setdefault(("nV", h), 0); state[("nV", h)] += 1
            if state[("nV", h)] == 3:
                state[("VF", h)] = True
                if h == 3: o_readback(slotn[0] + 2)
        if kind == "O" and b == 1 and (g & 1) == 1:
            lastst = (g == 11)
            n = 0
            for tb in range(4):
                for gg in (g - 1, g):
                    o = OUTP[gg, tb]
                    rel = slotn[0] + (10 if lastst else cfg.st_delay) + cfg.st_step * n; n += 1
                    if not cfg.x_nostore:
                        P.add(Ins("vst", "buffer_store_dwordx4 {0}, {1}, " + S_OUT + ", 0 offen offset:{2}" + cfg.st_flags, [o, XOFF[tb], str(64 * gg)],
                                  uses=[o, XOFF[tb]], release=rel, deadline=rel + 20))
    assert not pend_s and len(state["pv_done"]) == 4, (pend_s, state)
    P.releasable = RDH + [DMAV768, XDV] + XRD + [X[tb][s] for tb in range(4) for s in range(3, 12)]
    return P, pre_text, stages

def emit(cfg, path):
    P, pre_text, stages = build(cfg)
    P.schedule()
    vq = list(range(32, 256, 4)); aq = list(range(192, 256, 4)); vs = list(range(27, 32))
    P.allocate(vq, aq, vs, releasable=P.releasable)
    body = P.finalize()
    L = []
    A = L.append
    A(f"; @launch grid=(256,1,1) block=(256,1,1) lds={LDS_TOTAL}")
    A('.amdgcn_target "amdgcn-amd-amdhsa--gfx950"')
    A(".text")
    A(f".globl {NAME}\n.p2align 8\n.type {NAME},@function\n{NAME}:")
    if cfg.stamps: A("s_memrealtime s[46:47]")
    L += prologue(cfg)
    nvm = 0
    counting = False
    if cfg.l2pf and cfg.phase1:
        A(f"s_mov_b32 m0, {LDS_PF}")
        A(f"s_mul_i32 s41, s45, {2*PITCH_Q}")
        A(f"s_add_u32 s41, s41, {128*PITCH_Q + 3072}")
        A("buffer_load_dword v60, s[20:23], s41 offen lds")
    for i in pre_text:
        if i == "RPB":
            for a in range(4):
                A(f"buffer_load_dwordx2 v[{44+2*a}:{45+2*a}], v41, {S_B}, 0 offen offset:{(3-a)*8}")
            counting = True
            if cfg.code_prefetch:
                A("s_getpc_b64 s[48:49]")
                A("L_pc:")
                A("s_and_b32 s41, s45, 15")
                A("s_lshl_b32 s41, s41, 13")
                A("v_lshlrev_b32 v62, 7, v1")
                A("v_add_u32 v62, s41, v62")
                A("v_min_u32 v62, L_end-L_pc-4, v62")
                A(f"s_mov_b32 m0, {LDS_PF}")
                A("s_nop 0")
                A("global_load_lds_dword v62, s[48:49]")
                nvm += 1
        elif i == "PRO2":
            L += prologue2(cfg, min(nvm, 63))
        else:
            A(i.text())
            if counting and i.kind in ASYNC_VM: nvm += 1
    L += body
    if cfg.stamps:
        n = len(cfg.stamps)
        A("s_waitcnt vmcnt(0)")
        A("s_memrealtime s[4:5]")
        A("s_memtime s[92:93]")
        A("s_load_dwordx2 s[6:7], s[0:1], 64")
        A("s_waitcnt lgkmcnt(0)")
        A("s_mov_b32 s8, s6\ns_and_b32 s9, s7, 0xffff\ns_mov_b32 s10, 0x100000\ns_mov_b32 s11, 0x20000")
        A("v_mov_b32 v32, 0")
        regs = [46, 4] + [58 + 2 * k for k in range(n)] + [88, 90, 92]
        for j, r in enumerate(regs): A(f"v_writelane_b32 v32, s{r}, {j}")
        A("s_lshl_b32 s3, s2, 2\ns_add_u32 s3, s3, s36\ns_lshl_b32 s3, s3, 7")
        A("v_lshlrev_b32 v33, 2, v1")
        A("v_add_u32 v33, s3, v33")
        A("v_cmp_gt_u32 vcc, 32, v1")
        A("s_and_saveexec_b64 s[12:13], vcc")
        A("buffer_store_dword v32, v33, s[8:11], 0 offen")
        A("s_waitcnt vmcnt(0)")
    A("L_done:")
    A("s_endpgm")
    A("L_end:")
    A('.section .rodata,"a"\n.p2align 6')
    A(f".amdhsa_kernel {NAME}")
    A("  .amdhsa_next_free_vgpr 512\n  .amdhsa_next_free_sgpr 96\n  .amdhsa_accum_offset 256")
    A("  .amdhsa_group_segment_fixed_size 0\n  .amdhsa_kernarg_size 72\n  .amdhsa_user_sgpr_count 2")
    A("  .amdhsa_user_sgpr_kernarg_segment_ptr 1\n  .amdhsa_system_sgpr_workgroup_id_x 1")
    A(".end_amdhsa_kernel")
    txt = "\n".join(L) + "\n"
    open(path, "w").write(txt)
    print(f"; wrote {path}: {len(txt)} bytes", file=sys.stderr)
    return P

if __name__ == "__main__":
    cfg = Cfg()
    for a in sys.argv[2:]:
        k, v = a.split("=", 1); setattr(cfg, k, eval(v))
    emit(cfg, sys.argv[1])
```

```python
import sys, math, struct
from sched import *

NAME = "standalone__window_attn_swin__vision_kernel"
def f2u(x): return struct.unpack("<I", struct.pack("<f", x))[0]
SCALE = 96 ** -0.5
LOG2E = 1.4426950408889634
C_EXP = SCALE * LOG2E
INV_SCALE = 1.0 / SCALE
MASKV = -100.0

SLOT = 49152
LDS_O = 2 * SLOT
LDS_TB = LDS_O + 49152
LDS_BOUNCE = LDS_TB + 11520
LDS_PF = LDS_BOUNCE + 4096
LDS_TOTAL = 163840
PITCH_Q = 2304
PITCH_O = 768
QS = 12288

S_X, S_W, S_WO, S_B, S_OUT = "s[16:19]", "s[20:23]", "s[24:27]", "s[28:31]", "s[32:35]"
S_WAVE, S_WQROW, S_WOROW, S_LDSW, S_C = "s36", "s37", "s38", "s39", "s40"

class Cfg:
    code_prefetch = True
    phase1 = True
    x_nodmawait = False
    x_nobar = False
    x_nostore = False
    stamps = None
    urgent = 3
    backlog = 5
    dma_step = 4
    st_step = 10
    st_delay = 52
    sm_span = (400, 420, 420, 380)
    nt_x = True
    xahead = 3
    p1_wstep = 6
    p1_xstart = 8
    p1_xstep = 28
    cvt_dl = 28
    st_flags = ""
    x_wo_same = False
    x_p1_nomfma = False
    x_p1_nodma = False
    rt_stamps = False
    dbg_out = False
    l2pf = True
    pf_stage = 0
    x_wo_nodma = False
    st_pair = True

def prologue(cfg):
    L = []
    A = L.append
    A("s_load_dwordx4 s[4:7], s[0:1], 0")
    A("s_load_dwordx4 s[8:11], s[0:1], 16")
    A("s_load_dwordx2 s[12:13], s[0:1], 48")
    A("s_cmp_ge_u32 s2, 256")
    A("s_cbranch_scc1 L_done")
    A("v_lshrrev_b32 v32, 6, v0")
    A("v_and_b32 v1, 63, v0")
    A("v_readfirstlane_b32 s36, v32")
    A("v_and_b32 v33, 15, v1")
    A("v_lshrrev_b32 v34, 4, v1")
    A("s_nop 1")
    A("s_lshl_b32 s14, s2, 2")
    A("s_add_u32 s14, s14, s36")
    A("s_lshr_b32 s15, s14, 5")
    A("s_and_b32 s14, s14, 31")
    A("s_lshl_b32 s41, s15, 3")
    A("s_add_u32 s41, s41, 4")
    A("s_lshl_b32 s42, s14, 3")
    A("s_add_u32 s42, s42, 4")
    A("v_and_b32 v35, 7, v33")
    A("v_lshrrev_b32 v36, 3, v33")
    A("v_add_u32 v35, s42, v35")
    A("v_and_b32 v35, 255, v35")
    A("s_movk_i32 s43, 768")
    for tb in range(4):
        A(f"v_add_u32 v37, s41, v36")
        if tb: A(f"v_add_u32 v37, {2*tb}, v37")
        A(f"v_and_b32 v37, 255, v37")
        A(f"v_lshl_add_u32 v37, v37, 8, v35")
        A(f"v_mul_lo_u32 v37, v37, s43")
        A(f"v_lshl_add_u32 v{2+tb}, v34, 4, v37")
    A("v_lshrrev_b32 v52, 3, v1")
    A("v_bfe_u32 v53, v1, 4, 1")
    A("s_and_b32 s41, s36, 1")
    A("s_lshl_b32 s41, s41, 1")
    A("v_or_b32 v53, s41, v53")
    A("v_lshlrev_b32 v53, 1, v53")
    A("v_and_b32 v54, 7, v1")
    A("v_xor_b32 v54, v54, v53")
    A("v_lshrrev_b32 v12, 2, v54")
    A("v_and_b32 v54, 3, v54")
    A("v_mul_u32_u24 v52, 2304, v52")
    A("v_lshl_add_u32 v52, v54, 4, v52")
    A("v_lshl_add_u32 v8, v12, 6, v52")
    A("v_mul_u32_u24 v53, 768, v12")
    A("v_add_u32 v16, v52, v53")
    A("s_lshr_b32 s45, s2, 3")
    A("s_lshl_b32 s45, s45, 2")
    A("s_add_u32 s45, s45, s36")
    A("v_min_u32 v38, 179, v0")
    A("v_mul_u32_u24 v39, 21846, v38")
    A("v_lshrrev_b32 v39, 18, v39")
    A("v_mul_u32_u24 v40, 12, v39")
    A("v_sub_u32 v40, v38, v40")
    A("v_mul_u32_u24 v41, 15, v39")
    A("v_add_u32 v41, 11, v41")
    A("v_sub_u32 v41, v41, v40")
    A("v_lshlrev_b32 v41, 3, v41")
    A("v_mul_u32_u24 v42, 48, v39")
    A("v_lshl_add_u32 v42, v40, 2, v42")
    A(f"v_add_u32 v42, {LDS_TB}, v42")
    if cfg.l2pf and cfg.phase1:
        A("v_min_u32 v60, 9, v1")
        A("v_cmp_lt_u32 vcc, 4, v60")
        A("s_nop 1")
        A("v_cndmask_b32 v61, 0, 1, vcc")
        A("v_mul_u32_u24 v62, 5, v61")
        A("v_sub_u32 v60, v60, v62")
        A("v_lshrrev_b32 v62, 1, v60")
        A("v_mul_u32_u24 v62, 6, v62")
        A("v_and_b32 v60, 1, v60")
        A("v_add_u32 v60, v60, v62")
        A("v_lshlrev_b32 v60, 7, v60")
        A("v_mul_u32_u24 v61, 2304, v61")
        A("v_add_u32 v60, v60, v61")
    A("v_lshrrev_b32 v56, 3, v1")
    A("v_and_b32 v57, 6, v56")
    A("v_and_b32 v58, 7, v1")
    A("v_xor_b32 v57, v57, v58")
    A("s_lshl_b32 s42, s14, 3")
    A("s_add_u32 s42, s42, 4")
    A("v_add_u32 v56, s42, v56")
    A("v_and_b32 v56, 255, v56")
    A("v_mul_u32_u24 v56, 768, v56")
    A("v_lshl_add_u32 v24, v57, 4, v56")
    A("s_lshl_b32 s41, s15, 3")
    A("s_add_u32 s41, s41, 4")
    for r in range(8):
        A(f"s_add_u32 s42, s41, {r}")
        A("s_and_b32 s42, s42, 255")
        A(f"s_mul_i32 s{50+r}, s42, 196608")
    A(f"s_mul_i32 s37, s36, {8*PITCH_Q}")
    A(f"s_mul_i32 s38, s36, {8*PITCH_O}")
    A(f"s_mul_i32 s39, s36, {QS}")
    A(f"s_mov_b32 s40, {f2u(C_EXP):#x}")
    A("s_waitcnt lgkmcnt(0)")
    A("s_mov_b32 s16, s4\ns_and_b32 s17, s5, 0xffff\ns_mov_b32 s18, 50331648\ns_mov_b32 s19, 0x20000")
    A("s_sub_u32 s20, s6, 3072\ns_subb_u32 s21, s7, 0\ns_and_b32 s21, s21, 0xffff")
    A(f"s_mov_b32 s22, {884736+3072}\ns_mov_b32 s23, 0x20000")
    A("s_sub_u32 s24, s8, 3072\ns_subb_u32 s25, s9, 0\ns_and_b32 s25, s25, 0xffff")
    A(f"s_mov_b32 s26, {294912+3072}\ns_mov_b32 s27, 0x20000")
    A("s_mov_b32 s28, s10\ns_and_b32 s29, s11, 0xffff\ns_mov_b32 s30, 1800\ns_mov_b32 s31, 0x20000")
    A("s_mov_b32 s32, s12\ns_and_b32 s33, s13, 0xffff\ns_mov_b32 s34, 50331648\ns_mov_b32 s35, 0x20000")
    return L

def prologue2(cfg, nvm_after_rpb):
    L = []
    A = L.append
    A("v_bfe_u32 v52, v1, 2, 2")
    A("v_and_b32 v53, 3, v1")
    A("v_lshlrev_b32 v54, 7, v52")
    A("v_lshl_add_u32 v54, v53, 3, v54")
    A("v_and_b32 v55, 1, v34")
    A("v_lshrrev_b32 v56, 1, v34")
    A("v_lshrrev_b32 v57, 1, v52")
    A("v_lshl_add_u32 v57, v55, 1, v57")
    A("v_lshl_add_u32 v54, v57, 5, v54")
    A(f"v_mul_u32_u24 v57, {QS}, v34")
    A("v_add_u32 v6, v54, v57")
    A("v_xor_b32 v7, 32, v6")
    A("v_xor_b32 v17, 64, v6")
    A("v_xor_b32 v18, 96, v6")
    for k, r in enumerate((6, 7, 17, 18)):
        A(f"v_add_u32 v{19+k}, {LDS_O}, v{r}")
    A("v_and_b32 v58, 7, v33")
    A("v_and_b32 v57, 6, v33")
    A("v_xor_b32 v57, v57, v34")
    A("v_lshlrev_b32 v57, 4, v57")
    A("v_lshl_add_u32 v57, v58, 7, v57")
    A("v_lshl_add_u32 v57, v36, 10, v57")
    A(f"s_add_u32 s41, s39, {SLOT}")
    A("v_add_u32 v25, s41, v57")
    A("v_xor_b32 v26, 64, v25")
    A("v_lshlrev_b32 v15, 4, v1")
    A(f"s_mul_i32 s41, s36, 12288")
    A(f"s_add_u32 s41, s41, {LDS_O}")
    A("v_add_u32 v10, s41, v15")
    A(f"s_lshl_b32 s41, s36, 10")
    A(f"s_add_u32 s41, s41, {LDS_BOUNCE}")
    A("v_add_u32 v15, s41, v15")
    A("v_and_b32 v57, 7, v33")
    A("v_sub_u32 v57, 7, v57")
    A("v_lshl_add_u32 v57, v55, 2, v57")
    A("v_and_b32 v58, 3, v57")
    A("v_sub_u32 v57, v57, v58")
    A("v_mul_u32_u24 v58, 720, v58")
    A("v_lshl_add_u32 v58, v57, 2, v58")
    A("v_sub_u32 v59, v36, v56")
    A("v_add_u32 v59, 1, v59")
    A("v_mul_u32_u24 v59, 48, v59")
    A("v_add_u32 v58, v58, v59")
    A(f"v_add_u32 v9, {LDS_TB}, v58")
    A("v_bfe_u32 v57, v33, 2, 1")
    A("v_xor_b32 v57, v57, v55")
    A("s_cmp_eq_u32 s14, 31")
    A("s_cselect_b32 s41, 1, 0")
    A("v_and_b32 v57, s41, v57")
    A("v_cvt_f32_u32 v58, v57")
    A(f"v_mul_f32 v11, {f2u(MASKV*INV_SCALE):#x}, v58")
    A(f"v_mul_f32 v13, {f2u(MASKV*LOG2E):#x}, v58")
    A("s_cmp_eq_u32 s15, 31")
    A("s_cselect_b32 s41, 1, 0")
    A("v_or_b32 v57, s41, v57")
    A("v_cvt_f32_u32 v58, v57")
    A(f"v_mul_f32 v23, {f2u(MASKV*INV_SCALE):#x}, v58")
    A(f"v_mul_f32 v14, {f2u(MASKV*LOG2E):#x}, v58")
    A(f"s_waitcnt vmcnt({nvm_after_rpb})")
    A(f"s_mov_b32 s41, {f2u(INV_SCALE):#x}")
    for a in range(4):
        for h in range(4):
            src = 44 + 2 * a + (h >> 1)
            t = 60 + (a * 4 + h) % 8
            if h & 1: A(f"v_and_b32 v{t}, 0xffff0000, v{src}")
            else: A(f"v_lshlrev_b32 v{t}, 16, v{src}")
            A(f"v_mul_f32 v{t}, s41, v{t}")
            A(f"ds_write_b32 v42, v{t} offset:{h*2880 + a*720}")
    A("s_waitcnt lgkmcnt(0)")
    return L

def build(cfg):
    P = Prog()
    P.urgent = cfg.urgent; P.backlog = cfg.backlog
    XOFF = [P.vr(f"xoff{t}", 1, "v", 2 + t) for t in range(4)]
    RD = [P.vr("rd0", 1, "v", 6), P.vr("rd1", 1, "v", 7), P.vr("rd2", 1, "v", 17), P.vr("rd3", 1, "v", 18)]
    RDH = [P.vr(f"rdh{k}", 1, "v", 19 + k) for k in range(4)]
    DMAV = P.vr("dmav", 1, "v", 8)
    DMAV768 = P.vr("dmav768", 1, "v", 16)
    BIAS = P.vr("bias", 1, "v", 9)
    OLDS = P.vr("olds", 1, "v", 10)
    VMS = P.vr("vms", 1, "v", 11); VMD = P.vr("vmd", 1, "v", 23)
    VH = P.vr("vh", 1, "v", 12)
    CMS = P.vr("cms", 1, "v", 13); CMD = P.vr("cmd", 1, "v", 14)
    BNC = P.vr("bounce", 1, "v", 15)
    LANE = P.vr("lane", 1, "v", 1)
    XDV = P.vr("xdv", 1, "v", 24)
    XRD = [P.vr("xr0", 1, "v", 25), P.vr("xr1", 1, "v", 26)]
    X = [[P.vr(f"X{t}_{s}", 4, "a", 4 * (t * 12 + s)) for s in range(12)] for t in range(4)]
    M0 = P.vr("m0", 1, "m", 0)
    SOFF = [P.vr("so0", 1, "s", 42), P.vr("so1", 1, "s", 43)]
    tcount = [0]
    def T(n="t"):
        tcount[0] += 1
        return P.vr(f"t_{n}{tcount[0]}", 1, "v")
    qcount = [0]
    def Q(n, cls="v"):
        qcount[0] += 1
        return P.vr(f"{n}#{qcount[0]}", 4, cls)
    slotn = [0]
    def mfma(D, A_, B_, first=False):
        if first:
            i = Ins("mfma", "v_mfma_f32_16x16x32_bf16 {0}, {1}, {2}, 0", [D, A_, B_], defs=[D], uses=[A_, B_])
        else:
            i = Ins("mfma", "v_mfma_f32_16x16x32_bf16 {0}, {1}, {2}, {0}", [D, A_, B_], defs=[D], uses=[A_, B_], cuses=[D])
        if cfg.x_p1_nomfma and slotn[0] < 768: i.fmt = "s_nop 0"
        P.add(i, main=True); slotn[0] += 1
        return i
    def valu(fmt, ops, defs, uses, kind="valu", release=0, deadline=None, after=()):
        return P.add(Ins(kind, fmt, ops, defs=defs, uses=uses, release=release, deadline=deadline), after=after)

    def qcol(kind, h, g): return ({"Q": 0, "K": 768, "V": 1536}[kind] + 192 * h + 64 * g)
    def mk(a, b):
        ca, cb = qcol(*a), qcol(*b)
        if ca < cb: return dict(col=ca, delta=cb - ca, grp=[a, b], order=[0, 1], wo=False)
        return dict(col=cb, delta=ca - cb, grp=[b, a], order=[1, 0], wo=False)
    seq = [(("V",0,2),("Q",1,0)), (("Q",1,1),("Q",1,2)), (("K",1,1),("K",1,2)), (("K",1,0),("V",1,0)), (("V",1,1),("V",1,2)),
           (("Q",2,0),("Q",2,1)), (("Q",2,2),("K",2,2)), (("K",2,0),("K",2,1)), (("V",2,0),("V",2,1)), (("V",2,2),("Q",3,0)),
           (("Q",3,1),("Q",3,2)), (("K",3,1),("K",3,2)), (("K",3,0),("V",3,0)), (("V",3,1),("V",3,2))]
    if not cfg.phase1:
        seq = [(("Q",0,0),("Q",0,1)), (("Q",0,2),("K",0,2)), (("K",0,0),("K",0,1)), (("V",0,0),("V",0,1))] + seq
    stages = [mk(a, b) for a, b in seq]
    for j in range(6):
        stages.append(dict(col=128 * j, delta=64, grp=[("O", None, 2 * j), ("O", None, 2 * j + 1)], order=[0, 1], wo=True))
    for i, st in enumerate(stages):
        st["i"] = i; st["slot"] = ((i + (1 if cfg.phase1 else 0)) & 1) * SLOT; st["dmas"] = []; st["reads"] = []; st["bar"] = None
    cur_delta = [64]

    def dma_one(srd, srow, vo, m0base, lit, io, after, rel, pre, dl):
        out = []
        if m0base is not None:
            ins = Ins("salu", "s_add_u32 m0, " + S_LDSW + ", {0}", [str(m0base)], defs=[M0], release=rel)
            P.add(ins, after=after, pre=pre); out.append(ins)
        so = SOFF[dma_one.n % 2]; dma_one.n += 1
        ins = Ins("salu", "s_add_u32 {0}, " + srow + ", {1}", [so, str(lit)], defs=[so], release=rel)
        P.add(ins, after=after, pre=pre); out.append(ins)
        ins = Ins("dma", "buffer_load_dwordx4 {0}, " + srd + ", {1} offen offset:{2} lds", [vo, so, str(io)],
                  uses=[vo, so, M0], release=rel, deadline=dl)
        P.add(ins, after=after, pre=pre); out.append(ins)
        return out
    dma_one.n = 0

    def dma_stage(st, after, release, pre=False):
        out = []
        pitch = PITCH_O if st["wo"] else PITCH_Q
        srd = S_WO if st["wo"] else S_W
        srow = S_WOROW if st["wo"] else S_WQROW
        if not st["wo"] and st["delta"] != cur_delta[0]:
            d = st["delta"] - cur_delta[0]; cur_delta[0] = st["delta"]
            ins = Ins("valu", "v_mad_i32_i24 {0}, {1}, s44, {0}", [DMAV, VH], defs=[DMAV], uses=[DMAV, VH, SD], release=release)
            i0 = Ins("salu", "s_mov_b32 s44, {0}", [str(d)], defs=[SD], release=release)
            P.add(i0, after=after, pre=pre); P.add(ins, after=after, pre=pre); out += [i0, ins]
        for i in range(12):
            rel = release + cfg.dma_step * i
            io = (i % 4) * 1024
            m0b = st["slot"] + (i // 4) * 4096 if i % 4 == 0 else None
            lit = st["col"] + 32 * i * pitch + 3072 - io
            if st["wo"] and cfg.x_wo_same: lit = 32 * i * pitch + 3072 - io
            if st["wo"] and cfg.x_wo_nodma and st["col"] > 128: continue
            o = dma_one(srd, srow, DMAV, m0b, lit, io, after, rel, pre, rel + 16)
            out += o; st["dmas"].append(o[-1])
        return out
    SD = P.vr("sd", 1, "s", 44)

    pre_text = []
    def xload(tb, s, pre, rel=0, dl=None):
        nt = " nt" if cfg.nt_x else ""
        ins = Ins("vld", "buffer_load_dwordx4 {0}, {1}, " + S_X + ", 0 offen offset:{2}" + nt, [X[tb][s], XOFF[tb], str(64 * s)],
                  defs=[X[tb][s]], uses=[XOFF[tb]], release=rel, deadline=dl)
        P.add(ins, pre=pre)
        return ins

    ringq = []
    def read_frag(addr, off, after, rel, cls, reads):
        w = Q("W", cls)
        extra = []
        if len(ringq) >= 6:
            extra = ringq[-6]["users"]
        rec = {"users": []}; ringq.append(rec)
        for e, o in enumerate(off):
            ins = Ins("dsr", "ds_read_b64_tr_b16 {0}, {1} offset:{2}", [w[2 * e:2 * e + 2], addr[e], str(o)],
                      defs=[w[2 * e:2 * e + 2]], uses=[addr[e]], release=rel + 2 * e)
            P.add(ins, after=list(after) + list(extra)); reads.append(ins)
        return w, rec

    def stamp(i):
        if cfg.stamps and i in cfg.stamps:
            k = cfg.stamps.index(i)
            P.add(Ins("salu", ("s_memrealtime" if cfg.rt_stamps else "s_memtime") + f" s[{58+2*k}:{59+2*k}]"), main=True)
            if k in (0, len(cfg.stamps) - 1):
                r = 88 if k == 0 else 90
                P.add(Ins("salu", f"s_memrealtime s[{r}:{r+1}]"), main=True)

    def barrier(prev_reads, dmas, name):
        b = Ins("bar", "s_barrier")
        b.needs = list(prev_reads) + ([] if (cfg.x_nodmawait and prev_reads) else list(dmas))
        if cfg.x_nobar and prev_reads: b.fmt = "s_nop 0"
        P.add(b, main=True, after=[(r, 4) for r in prev_reads[-4:]] + list(prev_reads) + list(dmas))
        stamp(name)
        return b

    QF = {}; KF = {}; VF = {}; SS = {}; PF = {}; OF = {}; OUTP = {}
    kdone = {h: 0 for h in range(4)}

    def cvt2(dst, lo, acc, release=0, dl=None):
        dl = slotn[0] + cfg.cvt_dl if dl is None else dl
        valu("v_cvt_pk_bf16_f32 {0}, {1}, {2}", [dst[lo], acc[0], acc[1]], [dst[lo]], [acc[0], acc[1]], release=release, deadline=dl)
        valu("v_cvt_pk_bf16_f32 {0}, {1}, {2}", [dst[lo + 1], acc[2], acc[3]], [dst[lo + 1]], [acc[2], acc[3]], release=release, deadline=dl)

    def bias_reads(h, rel):
        n = 0
        for kb in range(4):
            for qb in range(4):
                q = Q(f"S{h}_{kb}{qb}", "v"); SS[h, kb, qb] = q
                off = h * 2880 + (qb - kb + 3) * 96
                P.add(Ins("dsr", "ds_read_b128 {0}, {1} offset:{2}", [q, BIAS, str(off)], defs=[q], uses=[BIAS], release=rel + 2 * n)); n += 1

    def s_part(h, g):
        for kb in range(4):
            for qb in range(4):
                mfma(SS[h, kb, qb], KF[h, g, kb], QF[h, g, qb])

    def xreduce(vals, op, rel):
        m0, m1, m2, m3 = vals
        def perm(n, a, b): return valu(f"v_permlane{n}_swap_b32 {{0}}, {{1}}", [a, b], [a, b], [a, b], kind="perm", release=rel)
        perm(32, m0, m1); x = T("x"); valu(op + " {0}, {1}, {2}", [x, m0, m1], [x], [m0, m1], release=rel)
        perm(32, m2, m3); y = T("y"); valu(op + " {0}, {1}, {2}", [y, m2, m3], [y], [m2, m3], release=rel)
        perm(16, x, y); z = T("z"); valu(op + " {0}, {1}, {2}", [z, x, y], [z], [x, y], release=rel)
        return z
    def xbroadcast(z, rel):
        def perm(n, a, b): return valu(f"v_permlane{n}_swap_b32 {{0}}, {{1}}", [a, b], [a, b], [a, b], kind="perm", release=rel)
        def mov(d, s_): return valu("v_mov_b32 {0}, {1}", [d, s_], [d], [s_], release=rel)
        a = z; b = T("b"); mov(b, a); perm(16, a, b)
        a2 = T("a"); mov(a2, a); perm(32, a, a2)
        b2 = T("b"); mov(b2, b); perm(32, b, b2)
        return [a, a2, b, b2]

    def softmax(h, r0, r1):
        n_total = 361
        cnt = [0]
        def rel():
            cnt[0] += 1
            return int(r0 + (r1 - r0) * cnt[0] / n_total)
        S = lambda kb, qb: SS[h, kb, qb]
        ms = []
        for qb in range(4):
            same = [2 * (qb >> 1), 2 * (qb >> 1) + 1]; diff = [k for k in range(4) if k not in same]
            parts = []
            for ks, mk_ in ((same, VMS), (diff, VMD)):
                t = T("m"); e = [S(ks[0], qb)[r] for r in range(4)] + [S(ks[1], qb)[r] for r in range(4)]
                valu("v_max3_f32 {0}, {1}, {2}, {3}", [t, e[0], e[1], e[2]], [t], e[0:3], release=rel())
                valu("v_max3_f32 {0}, {0}, {1}, {2}", [t, e[3], e[4]], [t], [t, e[3], e[4]], release=rel())
                valu("v_max3_f32 {0}, {0}, {1}, {2}", [t, e[5], e[6]], [t], [t, e[5], e[6]], release=rel())
                valu("v_max_f32 {0}, {0}, {1}", [t, e[7]], [t], [t, e[7]], release=rel())
                valu("v_add_f32 {0}, {0}, {1}", [t, mk_], [t], [t, mk_], release=rel())
                parts.append(t)
            valu("v_max_f32 {0}, {0}, {1}", [parts[0], parts[1]], [parts[0]], parts, release=rel())
            ms.append(parts[0])
        r = rel(); z = xreduce(ms, "v_max_f32", r); [rel() for _ in range(5)]
        r = rel(); mb = xbroadcast(z, r); [rel() for _ in range(5)]
        As = []; Ad = []
        for qb in range(4):
            a = T("A"); valu("v_fma_f32 {0}, -{1}, " + S_C + ", {2}", [a, mb[qb], CMS], [a], [mb[qb], CMS], release=rel()); As.append(a)
            a = T("A"); valu("v_fma_f32 {0}, -{1}, " + S_C + ", {2}", [a, mb[qb], CMD], [a], [mb[qb], CMD], release=rel()); Ad.append(a)
        ls = []
        for qb in range(4):
            l = [T("l"), T("l")]
            for kb in range(4):
                a = As[qb] if (kb >> 1) == (qb >> 1) else Ad[qb]
                for r_ in range(4):
                    e = S(kb, qb)[r_]
                    valu("v_fma_f32 {0}, {0}, " + S_C + ", {1}", [e, a], [e], [e, a], release=rel())
                    valu("v_exp_f32 {0}, {0}", [e], [e], [e], kind="trans", release=rel())
                for r_ in (0, 2):
                    e0 = S(kb, qb)[r_]; e1 = S(kb, qb)[r_ + 1]; t = l[r_ >> 1]
                    if kb == 0:
                        valu("v_add_f32 {0}, {1}, {2}", [t, e0, e1], [t], [e0, e1], release=rel())
                    else:
                        valu("v_add_f32 {0}, {0}, {1}", [t, e0], [t], [t, e0], release=rel())
                        valu("v_add_f32 {0}, {0}, {1}", [t, e1], [t], [t, e1], release=rel())
            valu("v_add_f32 {0}, {0}, {1}", [l[0], l[1]], [l[0]], l, release=rel())
            ls.append(l[0])
        r = rel(); z = xreduce(ls, "v_add_f32", r); [rel() for _ in range(5)]
        valu("v_rcp_f32 {0}, {0}", [z], [z], [z], kind="trans", release=rel())
        r = rel(); rb = xbroadcast(z, r); [rel() for _ in range(5)]
        for qb in range(4):
            for k2 in range(2):
                pf = Q(f"PF{h}_{k2}{qb}"); PF[h, k2, qb] = pf
                for half in range(2):
                    s_ = S(2 * k2 + half, qb)
                    for r_ in range(4):
                        valu("v_mul_f32 {0}, {0}, {1}", [s_[r_], rb[qb]], [s_[r_]], [s_[r_], rb[qb]], release=rel())
                    valu("v_cvt_pk_bf16_f32 {0}, {1}, {2}", [pf[2 * half], s_[0], s_[1]], [pf[2 * half]], [s_[0], s_[1]], release=rel())
                    valu("v_cvt_pk_bf16_f32 {0}, {1}, {2}", [pf[2 * half + 1], s_[2], s_[3]], [pf[2 * half + 1]], [s_[2], s_[3]], release=rel())

    o0w = []
    o1n = [0]
    lastb = [None]
    def pv(h):
        for k3 in range(3):
            for tb in range(4):
                OF[h, k3, tb] = Q(f"OF{h}_{k3}{tb}")
        for nb in range(6):
            accs = []
            for qb in range(4):
                a = Q(f"accO{h}_{nb}{qb}")
                mfma(a, VF[h, nb, 0], PF[h, 0, qb], first=True)
                mfma(a, VF[h, nb, 1], PF[h, 1, qb])
                accs.append(a)
            for qb in range(4):
                cvt2(OF[h, nb >> 1, qb], 2 * (nb & 1), accs[qb])
                if (nb & 1) == 0: continue
                of = OF[h, nb >> 1, qb]
                if h == 0:
                    off = ((nb >> 1) * 4 + qb) * 1024
                    o0w.append(P.add(Ins("dsw", "ds_write_b128 {0}, {1} offset:{2}", [OLDS, of, str(off)], uses=[OLDS, of], deadline=slotn[0] + 40)))
                if h == 1 and o1n[0] < 10:
                    o1n[0] += 1
                    aq = Q(f"O1A_{nb>>1}{qb}", "a")
                    w = P.add(Ins("dsw", "ds_write_b128 {0}, {1}", [BNC, of], uses=[BNC, of], deadline=slotn[0] + 40),
                              after=[lastb[0]] if lastb[0] else [])
                    lastb[0] = P.add(Ins("dsr", "ds_read_b128 {0}, {1}", [aq, BNC], defs=[aq], uses=[BNC], deadline=slotn[0] + 44), after=[w])
                    OF[h, nb >> 1, qb] = aq

    def o_readback(rel):
        n = 0
        for k3 in range(3):
            for tb in range(4):
                off = (k3 * 4 + tb) * 1024
                d = X[tb][k3]
                P.add(Ins("dsr", "ds_read_b128 {0}, {1} offset:{2}", [d, OLDS, str(off)], defs=[d], uses=[OLDS], release=rel + 2 * n), after=o0w); n += 1

    def bop(kind, tb, s):
        if kind != "O" or s < 3: return X[tb][s]
        return OF[s // 3, s % 3, tb]

    def convert(kind, h, g, b, acc):
        for tb in range(4):
            if kind == "Q":
                if b == 0: QF[h, g, tb] = Q(f"QF{h}_{g}{tb}")
                cvt2(QF[h, g, tb], 2 * b, acc[tb])
            elif kind == "K":
                if b == 0: KF[h, g, tb] = Q(f"KF{h}_{g}{tb}")
                cvt2(KF[h, g, tb], 2 * b, acc[tb])
            elif kind == "V":
                nb = 2 * g + b
                if (tb & 1) == 0: VF[h, nb, tb >> 1] = Q(f"VF{h}_{nb}{tb>>1}")
                cvt2(VF[h, nb, tb >> 1], 2 * (tb & 1), acc[tb])
            else:
                if b == 0: OUTP[g, tb] = Q(f"out{g}_{tb}")
                cvt2(OUTP[g, tb], 2 * b, acc[tb])

    tasks = []
    p1 = []
    if cfg.phase1:
        tiles = [dict(col=0, vo=DMAV, grp=[("Q",0,0),("Q",0,1)]), dict(col=128, vo=DMAV768, grp=[("Q",0,2),("K",0,2)]),
                 dict(col=768, vo=DMAV, grp=[("K",0,0),("K",0,1)]), dict(col=1536, vo=DMAV, grp=[("V",0,0),("V",0,1)])]
        def p1pos(u, t, sg):
            j = u % 3
            if j == 0: return 0, 2 * t + sg
            if j == 1: return LDS_O, 2 * t + sg
            return (0, 8 + 2 * t + sg) if t < 2 else (LDS_O, 8 + 2 * (t - 2) + sg)
        def p1_dma(u, after, rel, pre):
            out = []; dm = []
            n = 0
            for t in range(4):
                for sg in range(2):
                    reg, blk = p1pos(u, t, sg)
                    io = (blk % 4) * 1024
                    m0b = reg + (blk // 4) * 4096 if (n % 4 == 0) else None
                    lit = tiles[t]["col"] + (64 * u + 32 * sg) * PITCH_Q + 3072 - io
                    if cfg.x_p1_nodma and u >= 2: continue
                    o = dma_one(S_W, S_WQROW, tiles[t]["vo"], m0b, lit, io, after, rel + cfg.p1_wstep * n, pre, rel + cfg.p1_wstep * n + 8)
                    out += o; dm.append(o[-1]); n += 1
            return out, dm
        xblk = {}; xrd = {}
        def x_dma(n, rel, pre, dl=None):
            u, row = n // 8, n % 8
            aft = xrd.get(n - 12, [])
            nt = " nt" if cfg.nt_x else ""
            so = SOFF[dma_one.n % 2]; dma_one.n += 1
            out = []
            i0 = Ins("salu", "s_add_u32 m0, " + S_LDSW + ", {0}", [str(SLOT + 1024 * (n % 12))], defs=[M0], release=rel)
            i1 = Ins("salu", f"s_add_u32 {{0}}, s{50+row}, {128*u}", [so], defs=[so], release=rel)
            i2 = Ins("dma", "buffer_load_dwordx4 {0}, " + S_X + ", {1} offen" + nt + " lds", [XDV, so], uses=[XDV, so, M0], release=rel, deadline=dl)
            i2.needs = list(aft)
            P.add(i0, after=aft, pre=pre); P.add(i1, after=aft, pre=pre); P.add(i2, after=[(a, 6) for a in aft], pre=pre)
            xblk[n] = i2
            return [i0, i1, i2]
        def x_read(u, tb, rel, main=False):
            n = 8 * u + 2 * tb
            rd = []
            for sg in range(2):
                d = X[tb][2 * u + sg]
                i = Ins("dsr", "ds_read_b128 {0}, {1} offset:{2}", [d, XRD[sg], str(1024 * (n % 12))], defs=[d], uses=[XRD[sg]], release=rel, deadline=rel + 2)
                i.needs = [xblk[n], xblk[n + 1]]
                P.add(i, after=[xblk[n], xblk[n + 1]], main=main); rd.append(i)
            xrd[n] = rd; xrd[n + 1] = rd
            return rd
        def p1_x_step(u, rel):
            if u + 1 >= 6: return
            for tb in range(4):
                r = rel + cfg.p1_xstep * tb
                x_read(u + 1, tb, r)
                for k in range(2):
                    n = 8 * (u + 1) + 2 * tb + k + 12
                    if n < 48: x_dma(n, r + 2, False, r + 10)
        for u in range(6): p1.append(dict(dmas=None, reads=[], bar=None))
        pre_text.append("RPB")
        for n in range(8): pre_text += x_dma(n, 0, True)
        o, dm = p1_dma(0, [], 0, True); pre_text += o; p1[0]["dmas"] = dm
        for n in range(8, 12): pre_text += x_dma(n, 0, True)
        o, dm = p1_dma(1, [], 0, True); pre_text += o; p1[1]["dmas"] = dm
        pre_text.append("PRO2")
        for tb in range(4):
            x_read(0, tb, 0, main=True)
        for tb in range(4):
            for k in range(2):
                x_dma(12 + 2 * tb + k, 0, False, 4 + 4 * tb)
        for u in range(6):
            for t in range(4):
                for m in range(4):
                    kind, h, g = tiles[t]["grp"][m >> 1]
                    reg, b0 = p1pos(u, t, 0); _, b1 = p1pos(u, t, 1)
                    ad = RD[m] if reg == 0 else RDH[m]
                    tasks.append(dict(kind=kind, h=h, g=g, b=m & 1, s0=2 * u, key=("p1", t, m), first=(u == 0), last=(u == 5),
                                      addr=[[ad, ad], [ad, ad]], off=[[1024 * b0, 1024 * b0 + 512], [1024 * b1, 1024 * b1 + 512]],
                                      grp=("p1", u), newgrp=(t == 0 and m == 0), cls="v", acls=("a" if t == 3 else "v")))
    else:
        pre_text += dma_stage(stages[0], [], 0, pre=True)
        pre_text.append("RPB")
        for s2 in range(6):
            for tb in range(4):
                for s in (2 * s2, 2 * s2 + 1): pre_text.append(xload(tb, s, True))
        pre_text.append("PRO2")
    RDO = [P.vr(f"rdo{k}", 1, "v", r) for k, r in enumerate((6, 7, 17, 18))]
    for st in stages:
        i = st["i"]
        order = [(gi, b, pp) for gi in st["order"] for b in range(2) for pp in range(6)]
        if st["wo"] and st["g0"] if False else False: pass
        if st["wo"] and st["grp"][0][2] == 0:
            order = [(gi, b, pp) for gi in range(2) for b in range(2) for pp in range(4)] + [(gi, b, pp) for gi in range(2) for b in range(2) for pp in (4, 5)]
        for n, (gi, b, pp) in enumerate(order):
            kind, h, g = st["grp"][gi]
            m = 2 * gi + b
            if st["wo"]:
                ad = RD[gi + (2 if st["slot"] else 0)]
                off = [[1024 * s + 8 * b, 24576 + 1024 * s + 8 * b] for s in (2 * pp, 2 * pp + 1)]
            else:
                ad = RD[m]
                off = [[st["slot"] + 1024 * s, st["slot"] + 1024 * s + 512] for s in (2 * pp, 2 * pp + 1)]
            tasks.append(dict(kind=kind, h=h, g=g, b=b, s0=2 * pp, key=("st", i, m), first=(pp == 0), last=(pp == 5),
                              addr=[[ad, ad], [ad, ad]], off=off, grp=("st", i), newgrp=(n == 0), cls="av",
                              acls=("a" if (st["wo"] and st["grp"][0][2] == 0 and gi == 1) else "v"), n=n))

    def hooks(tk, idx):
        kind, h, g, b = tk["kind"], tk["h"], tk["g"], tk["b"]
    pend_s = []
    state = dict(pv_at={}, bias_done=set(), sm_done=set(), pv_done=set(), nK={h: 0 for h in range(4)})

    def switch_to_wo(rel, after):
        t1 = T("d"); t2 = T("d"); t3 = T("d")
        valu("v_lshrrev_b32 {0}, 3, {1}", [t1, LANE], [t1], [LANE], release=rel)
        valu("v_mul_u32_u24 {0}, 768, {0}", [t1], [t1], [t1], release=rel)
        valu("v_bfe_u32 {0}, {1}, 4, 1", [t2, LANE], [t2], [LANE], release=rel)
        valu("v_lshlrev_b32 {0}, 2, {0}", [t2], [t2], [t2], release=rel)
        valu("v_and_b32 {0}, 7, {1}", [t3, LANE], [t3], [LANE], release=rel)
        valu("v_xor_b32 {0}, {0}, {1}", [t3, t2], [t3], [t3, t2], release=rel)
        valu("v_lshl_add_u32 {0}, {1}, 4, {2}", [DMAV, t3, t1], [DMAV], [t3, t1], release=rel, after=after)
    def switch_rd_wo(rel):
        t1 = T("e"); t2 = T("e"); t3 = T("e")
        valu("v_lshrrev_b32 {0}, 5, {1}", [t1, LANE], [t1], [LANE], release=rel)
        valu(f"v_mul_u32_u24 {{0}}, {QS}, {{0}}", [t1], [t1], [t1], release=rel)
        valu("v_bfe_u32 {0}, {1}, 2, 3", [t2, LANE], [t2], [LANE], release=rel)
        valu("v_lshl_add_u32 {0}, {1}, 7, {0}", [t1, t2], [t1], [t1, t2], release=rel)
        valu("v_and_b32 {0}, 3, {1}", [t2, LANE], [t2], [LANE], release=rel)
        valu("v_lshl_add_u32 {0}, {1}, 4, {0}", [t1, t2], [t1], [t1, t2], release=rel)
        valu("v_bfe_u32 {0}, {1}, 3, 1", [t3, LANE], [t3], [LANE], release=rel)
        valu("v_lshl_add_u32 {0}, {1}, 6, {2}", [RD[0], t3, t1], [RD[0]], [t3, t1], release=rel)
        valu("v_xor_b32 {0}, 64, {1}", [RD[1], RD[0]], [RD[1]], [RD[0]], release=rel)
        valu(f"v_add_u32 {{0}}, {SLOT}, {{1}}", [RD[2], RD[0]], [RD[2]], [RD[0]], release=rel)
        valu(f"v_add_u32 {{0}}, {SLOT}, {{1}}", [RD[3], RD[1]], [RD[3]], [RD[1]], release=rel)

    def l2_prefetch(after, rel):
        t = T("pf"); t2 = T("pf")
        valu("v_min_u32 {0}, 53, {1}", [t, LANE], [t], [LANE], release=rel)
        valu("v_lshlrev_b32 {0}, 7, {0}", [t], [t], [t], release=rel)
        valu("v_min_u32 {0}, 17, {1}", [t2, LANE], [t2], [LANE], release=rel)
        valu("v_lshlrev_b32 {0}, 7, {0}", [t2], [t2], [t2], release=rel)
        for srd, tt, n in ((S_W, t, 54), (S_WO, t2, 18)):
            so = SOFF[dma_one.n % 2]; dma_one.n += 1
            P.add(Ins("salu", f"s_mov_b32 m0, {LDS_PF}", defs=[M0], release=rel), after=after)
            P.add(Ins("salu", "s_mul_i32 {0}, s45, " + str(n * 128), [so], defs=[so], release=rel), after=after)
            P.add(Ins("salu", "s_add_u32 {0}, {0}, 3072", [so], defs=[so], uses=[so], release=rel), after=after)
            P.add(Ins("dma", "buffer_load_dword {0}, " + srd + ", {1} offen lds", [tt, so], uses=[tt, so, M0], release=rel, deadline=rel + 30), after=after)

    groups = {}
    def group_rec(gid):
        if gid not in groups: groups[gid] = dict(reads=[], bar=None)
        return groups[gid]
    glist = []
    for tk in tasks:
        if tk["newgrp"]: glist.append(tk["grp"])
    def open_group(gid):
        k = glist.index(gid)
        prev = group_rec(glist[k - 1])["reads"] if k > 0 else []
        rec = group_rec(gid)
        if gid[0] == "p1":
            u = gid[1]
            rec["bar"] = barrier(prev, p1[u]["dmas"], ("p", u))
            if u + 2 < 6:
                o, dm = p1_dma(u + 2, [rec["bar"]], slotn[0] + 1, False); p1[u + 2]["dmas"] = dm
                pass
            p1_x_step(u, slotn[0] + cfg.p1_xstart)
            if u == 5:
                allrd = [i for k in sorted(xrd) for i in xrd[k]]
                o = dma_stage(stages[0], [rec["bar"]] + allrd[-8:], slotn[0] + 1)
                for i in o:
                    if i.kind == "dma": i.needs = allrd[-8:]; break
        else:
            st = stages[gid[1]]
            rec["bar"] = barrier(prev, st["dmas"], st["i"])
            i = st["i"]
            if cfg.l2pf and i == cfg.pf_stage: l2_prefetch([rec["bar"]], slotn[0] + 60)
            if i + 1 < len(stages):
                nxt = stages[i + 1]
                if nxt["wo"] and not st["wo"]:
                    switch_to_wo(slotn[0], list(st["dmas"]))
                dma_stage(nxt, [rec["bar"]], slotn[0] + 1)
    frags = {}
    def mk_reads(ti, rel):
        tk = tasks[ti]
        rec = group_rec(tk["grp"])
        if tk["kind"] == "O" and tk["newgrp"] and tk["g"] == 0: switch_rd_wo(slotn[0])
        fr = []
        for j in range(2):
            fr.append(read_frag(tk["addr"][j], tk["off"][j], [rec["bar"]], rel + 4 * j, tk["cls"], rec["reads"]))
        frags[ti] = fr
    open_group(tasks[0]["grp"])
    mk_reads(0, 0); mk_reads(1, 0)
    accs = {}
    stores_pending = []
    for ti, tk in enumerate(tasks):
        kind, h, g, b = tk["kind"], tk["h"], tk["g"], tk["b"]
        while pend_s and pend_s[0][0] <= slotn[0]:
            _, hh, gg = pend_s.pop(0)
            s_part(hh, gg)
            state["nK"][hh] += 1
            if state["nK"][hh] == 3:
                span = cfg.sm_span[hh]
                softmax(hh, slotn[0] + 8, slotn[0] + span)
                state["pv_at"][hh] = slotn[0] + span + 12
        for hh in list(state["pv_at"]):
            ok = slotn[0] >= state["pv_at"][hh] and ("VF", hh) in state
            if hh == 3: ok = (kind == "O" and tk["s0"] == 8 and tk["grp"] == ("st", len(stages) - 6)) and 3 not in state["pv_done"]
            if ok and hh not in state["pv_done"] and tk["first"] | (hh == 3):
                pv(hh); state["pv_done"].add(hh); del state["pv_at"][hh]
        if kind == "K" and h not in state["bias_done"] and not (tk["grp"][0] == "p1"):
            bias_reads(h, slotn[0] + 40); state["bias_done"].add(h)
        if tk["first"]: accs[tk["key"]] = [Q(f"acc{ti}_{tb}", tk["acls"]) for tb in range(4)]
        acc = accs[tk["key"]]
        fr = frags[ti]
        if tk["grp"][0] == "p1" and tk["newgrp"]:
            u = tk["grp"][1]
            P.add(Ins("wait", "", uses=[X[tb][s] for tb in range(4) for s in (2 * u, 2 * u + 1)]), main=True)
        if kind == "O" and tk["newgrp"] and g == 0:
            pass
        P.add(Ins("wait", "", uses=[f[0] for f in fr]), main=True)
        pstart = slotn[0]
        for tb in range(4):
            for j in range(2):
                s = tk["s0"] + j
                a_ = bop(kind, tb, s)
                first = tk["first"] and j == 0
                if kind == "V": i_ = mfma(acc[tb], a_, fr[j][0], first=first)
                else: i_ = mfma(acc[tb], fr[j][0], a_, first=first)
                fr[j][1]["users"].append(i_)
            if tb == 1 and ti + 2 < len(tasks):
                t2 = tasks[ti + 2]
                if t2["newgrp"]:
                    open_group(t2["grp"]); mk_reads(ti + 2, slotn[0])
                else: mk_reads(ti + 2, pstart + 1)
        if not tk["last"]: continue
        if tk["acls"] == "a":
            tmp = []
            for tb in range(4):
                q = Q(f"mv{ti}_{tb}")
                for r in range(4):
                    valu("v_accvgpr_read_b32 {0}, {1}", [q[r], acc[tb][r]], [q[r]], [acc[tb][r]], deadline=slotn[0] + 40)
                tmp.append(q)
            acc = tmp
        convert(kind, h, g, b, acc)
        if kind == "K" and b == 1:
            pend_s.append((slotn[0] + 24, h, g))
            if tk["grp"][0] == "p1" and h not in state["bias_done"]:
                bias_reads(h, slotn[0] + 4); state["bias_done"].add(h)
        if kind == "V" and b == 1:
            state.setdefault(("nV", h), 0); state[("nV", h)] += 1
            if state[("nV", h)] == 3:
                state[("VF", h)] = True
                if h == 3: o_readback(slotn[0] + 2)
        if kind == "O" and b == 1 and (g & 1) == 1:
            lastst = (g == 11)
            n = 0
            for tb in range(4):
                for gg in (g - 1, g):
                    o = OUTP[gg, tb]
                    rel = slotn[0] + (10 if lastst else cfg.st_delay) + cfg.st_step * n; n += 1
                    if not cfg.x_nostore:
                        P.add(Ins("vst", "buffer_store_dwordx4 {0}, {1}, " + S_OUT + ", 0 offen offset:{2}" + cfg.st_flags, [o, XOFF[tb], str(64 * gg)],
                                  uses=[o, XOFF[tb]], release=rel, deadline=rel + 20))
    assert not pend_s and len(state["pv_done"]) == 4, (pend_s, state)
    P.releasable = RDH + [DMAV768, XDV] + XRD + [X[tb][s] for tb in range(4) for s in range(3, 12)]
    return P, pre_text, stages

def emit(cfg, path):
    P, pre_text, stages = build(cfg)
    P.schedule()
    vq = list(range(32, 256, 4)); aq = list(range(192, 256, 4)); vs = list(range(27, 32))
    P.allocate(vq, aq, vs, releasable=P.releasable)
    body = P.finalize()
    L = []
    A = L.append
    A(f"; @launch grid=(256,1,1) block=(256,1,1) lds={LDS_TOTAL}")
    A('.amdgcn_target "amdgcn-amd-amdhsa--gfx950"')
    A(".text")
    A(f".globl {NAME}\n.p2align 8\n.type {NAME},@function\n{NAME}:")
    if cfg.stamps: A("s_memrealtime s[46:47]")
    L += prologue(cfg)
    nvm = 0
    counting = False
    if cfg.l2pf and cfg.phase1:
        A(f"s_mov_b32 m0, {LDS_PF}")
        A(f"s_mul_i32 s41, s45, {2*PITCH_Q}")
        A(f"s_add_u32 s41, s41, {128*PITCH_Q + 3072}")
        A("buffer_load_dword v60, s[20:23], s41 offen lds")
    for i in pre_text:
        if i == "RPB":
            for a in range(4):
                A(f"buffer_load_dwordx2 v[{44+2*a}:{45+2*a}], v41, {S_B}, 0 offen offset:{(3-a)*8}")
            counting = True
            if cfg.code_prefetch:
                A("s_getpc_b64 s[48:49]")
                A("L_pc:")
                A("s_and_b32 s41, s45, 15")
                A("s_lshl_b32 s41, s41, 13")
                A("v_lshlrev_b32 v62, 7, v1")
                A("v_add_u32 v62, s41, v62")
                A("v_min_u32 v62, L_end-L_pc-4, v62")
                A(f"s_mov_b32 m0, {LDS_PF}")
                A("s_nop 0")
                A("global_load_lds_dword v62, s[48:49]")
                nvm += 1
        elif i == "PRO2":
            L += prologue2(cfg, min(nvm, 63))
        else:
            A(i.text())
            if counting and i.kind in ASYNC_VM: nvm += 1
    L += body
    if cfg.stamps:
        n = len(cfg.stamps)
        A("s_waitcnt vmcnt(0)")
        A("s_memrealtime s[4:5]")
        A("s_memtime s[92:93]")
        A("s_load_dwordx2 s[6:7], s[0:1], %d" % (56 if cfg.dbg_out else 64))
        A("s_waitcnt lgkmcnt(0)")
        if cfg.dbg_out:
            for r in [4] + [58 + 2 * k for k in range(n)]: A(f"s_sub_u32 s{r}, s{r}, s46")
        A("s_mov_b32 s8, s6\ns_and_b32 s9, s7, 0xffff\ns_mov_b32 s10, %s\ns_mov_b32 s11, 0x20000" % ("64" if cfg.dbg_out else "0x100000"))
        A("v_mov_b32 v32, 0")
        regs = [46, 4] + [58 + 2 * k for k in range(n)] + [88, 90, 92]
        for j, r in enumerate(regs): A(f"v_writelane_b32 v32, s{r}, {j}")
        A("s_lshl_b32 s3, s2, 2\ns_add_u32 s3, s3, s36\ns_lshl_b32 s3, s3, 7")
        A("v_lshlrev_b32 v33, 2, v1")
        A("v_add_u32 v33, s3, v33")
        A("v_cmp_gt_u32 vcc, 32, v1")
        A("s_and_saveexec_b64 s[12:13], vcc")
        A("buffer_store_dword v32, v33, s[8:11], 0 offen")
        A("s_waitcnt vmcnt(0)")
    A("L_done:")
    A("s_endpgm")
    A("L_end:")
    A('.section .rodata,"a"\n.p2align 6')
    A(f".amdhsa_kernel {NAME}")
    A("  .amdhsa_next_free_vgpr 512\n  .amdhsa_next_free_sgpr 96\n  .amdhsa_accum_offset 256")
    A("  .amdhsa_group_segment_fixed_size 0\n  .amdhsa_kernarg_size 72\n  .amdhsa_user_sgpr_count 2")
    A("  .amdhsa_user_sgpr_kernarg_segment_ptr 1\n  .amdhsa_system_sgpr_workgroup_id_x 1")
    A(".end_amdhsa_kernel")
    txt = "\n".join(L) + "\n"
    open(path, "w").write(txt)
    print(f"; wrote {path}: {len(txt)} bytes", file=sys.stderr)
    return P

if __name__ == "__main__":
    cfg = Cfg()
    for a in sys.argv[2:]:
        k, v = a.split("=", 1); setattr(cfg, k, eval(v))
    emit(cfg, sys.argv[1])
```
